```python
import torch

def _softmax(x, axis=-1):
    return torch.softmax(x, dim=axis)
def _gelu(x):
    return torch.nn.functional.gelu(x, approximate="tanh")
def _silu(x):
    return torch.nn.functional.silu(x)
def _sigmoid(x):
    return torch.sigmoid(x)
def _layernorm(x, axis=-1, eps=1e-5):
    m = x.mean(dim=axis, keepdim=True)
    v = x.var(dim=axis, keepdim=True, unbiased=False)
    return (x - m) / torch.sqrt(v + eps)
def _scatter_add(tgt, idx, src, axis=0):
    return tgt.clone().index_add_(axis, idx, src)
def _segment_sum(src, seg, n):
    out = torch.zeros((n,) + src.shape[1:], dtype=src.dtype)
    return out.index_add_(0, seg, src)
def _pad(x, pw):
    flat = tuple(v for pair in reversed(pw) for v in pair)
    return torch.nn.functional.pad(x, flat)

kernel_name = 'standalone__layernorm_linear__sampling'

def setup_inputs():

    _w = (lambda a: (lambda t: t.to(torch.bfloat16) if t.is_floating_point() else t)(torch.as_tensor(a)))
    B, S, D = 1024, 8, 640
    return {
        "x": _w((lambda *s: torch.randn(*s, dtype=torch.bfloat16) * 0.05)(B, S, D)),
        "g": _w((lambda *s: torch.randn(*s, dtype=torch.bfloat16) * 0.05)(D) + 1.0),
        "b": _w((lambda *s: torch.randn(*s, dtype=torch.bfloat16) * 0.4)(D)),
        "w": _w((lambda *s: torch.randn(*s, dtype=torch.bfloat16) * 0.05)(D, D)),
    }

def reference(x, g, b, w):
    return (_layernorm(x, axis=-1) * g + b) @ w
```

```python
import sys

L = []
def e(s): L.append("    " + s)
def lab(s): L.append(s + ":")

HDR = open('standalone__layernorm_linear__sampling.s.ref').read().split('; Override')[0]

SLOT = 40960
LDS_GB = 0
LDS_ST = LDS_GB + 5120
LDS_RING = LDS_ST + 4096
LDS_TOTAL = LDS_RING + 3 * SLOT

S_MT, S_NS, S_W, S_KH, S_RB, S_T0, S_T1 = 24, 25, 26, 27, 28, 29, 30

XA = 0
ACC = 80
BF = 160
TMP = 200
V_LANE, V_XOFF, V_H, V_T0, V_T1, V_T2, V_T3 = 216, 217, 218, 219, 220, 221, 222
V_DMA = 223
V_LB = 228
V_SUM, V_SQ, V_RS, V_NM = 232, 233, 234, 231
V_STA, V_GBA, V_OOFF, V_EP = 235, 236, 237, 238
V_G, V_B = 239, 240
V_TID = 241
NVGPR = 244

e("s_cmp_ge_u32 s2, 256")
e("s_cbranch_scc1 L_end")
e("s_load_dwordx4 s[32:35], s[0:1], 0")
e("s_load_dwordx4 s[36:39], s[0:1], 16")
e("s_load_dwordx2 s[40:41], s[0:1], 32")
e("s_and_b32 s%d, s2, 7" % S_T0)
e("s_lshr_b32 s%d, s2, 3" % S_T1)
e("s_and_b32 s%d, s%d, 3" % (S_NS, S_T1))
e("s_lshr_b32 s%d, s%d, 2" % (S_T1, S_T1))
e("s_lshl_b32 s%d, s%d, 3" % (S_MT, S_T0))
e("s_add_u32 s%d, s%d, s%d" % (S_MT, S_MT, S_T1))
e("v_mov_b32 v%d, v0" % V_TID)
e("v_and_b32 v%d, 63, v0" % V_LANE)
e("v_lshrrev_b32 v%d, 6, v0" % V_T0)
e("s_nop 0")
e("v_readfirstlane_b32 s%d, v%d" % (S_W, V_T0))
e("s_nop 3")
e("s_and_b32 s%d, s%d, 3" % (S_RB, S_W))
e("s_lshr_b32 s%d, s%d, 2" % (S_KH, S_W))
e("s_waitcnt lgkmcnt(0)")
def srd(d, lo, hi, n):
    e("s_mov_b32 s%d, s%d" % (d, lo))
    e("s_and_b32 s%d, s%d, 0xffff" % (d+1, hi))
    e("s_mov_b32 s%d, %d" % (d+2, n))
    e("s_mov_b32 s%d, 0x00020000" % (d+3))
srd(4, 32, 33, 10485760)
srd(16, 34, 35, 1280)
srd(20, 36, 37, 1280)
srd(8, 38, 39, 819200)
srd(12, 40, 41, 10485760)
e("v_lshlrev_b32 v%d, 2, v0" % V_T1)
e("buffer_load_dword v%d, v%d, s[16:19], 0 offen" % (V_G, V_T1))
e("buffer_load_dword v%d, v%d, s[20:23], 0 offen" % (V_B, V_T1))
e("v_and_b32 v%d, 31, v%d" % (V_T0, V_LANE))
e("v_lshrrev_b32 v%d, 5, v%d" % (V_H, V_LANE))
e("s_lshl_b32 s%d, s%d, 7" % (S_T0, S_MT))
e("s_lshl_b32 s%d, s%d, 5" % (S_T1, S_RB))
e("s_add_u32 s%d, s%d, s%d" % (S_T0, S_T0, S_T1))
e("v_add_u32 v%d, s%d, v%d" % (V_T0, S_T0, V_T0))
e("s_movk_i32 s%d, 1280" % S_T1)
e("v_mul_lo_u32 v%d, v%d, s%d" % (V_XOFF, V_T0, S_T1))
e("v_mov_b32 v%d, v%d" % (V_OOFF, V_XOFF))
e("s_mul_i32 s%d, s%d, 640" % (S_T1, S_KH))
e("v_add_u32 v%d, s%d, v%d" % (V_XOFF, S_T1, V_XOFF))
e("v_lshl_add_u32 v%d, v%d, 4, v%d" % (V_XOFF, V_H, V_XOFF))
for s in range(20):
    e("buffer_load_dwordx4 v[%d:%d], v%d, s[4:7], 0 offen offset:%d" % (XA+4*s, XA+4*s+3, V_XOFF, 32*s))
e("s_mul_i32 s%d, s%d, 320" % (S_T0, S_W))
e("s_mul_i32 s%d, s%d, 320" % (S_T1, S_NS))
e("s_movk_i32 s44, 3277")
e("s_movk_i32 s45, 1280")
for u in range(5):
    e("v_add_u32 v%d, s%d, v%d" % (V_T0, S_T0, V_LANE))
    if u: e("v_add_u32 v%d, %d, v%d" % (V_T0, 64*u, V_T0))
    e("v_mul_lo_u32 v%d, v%d, s44" % (V_T1, V_T0))
    e("v_lshrrev_b32 v%d, 16, v%d" % (V_T1, V_T1))
    e("v_mul_u32_u24 v%d, 20, v%d" % (V_T2, V_T1))
    e("v_sub_u32 v%d, v%d, v%d" % (V_T2, V_T0, V_T2))
    e("v_lshrrev_b32 v%d, 6, v%d" % (V_T3, V_T1))
    e("v_mul_u32_u24 v%d, 320, v%d" % (V_T3, V_T3))
    e("v_and_b32 v%d, 63, v%d" % (V_T1, V_T1))
    e("v_add_u32 v%d, v%d, v%d" % (V_T1, V_T1, V_T3))
    e("v_mul_lo_u32 v%d, v%d, s45" % (V_T1, V_T1))
    e("v_lshl_add_u32 v%d, v%d, 4, v%d" % (V_T1, V_T2, V_T1))
    e("v_add_u32 v%d, s%d, v%d" % (V_DMA+u, S_T1, V_T1))
e("s_mul_i32 s46, s%d, 5120" % S_W)
def dma(stage):
    slot = stage % 3
    e("s_mov_b32 s47, %d" % (stage*81920))
    for u in range(5):
        e("s_add_u32 s48, s46, %d" % (LDS_RING + slot*SLOT + u*1024))
        e("s_mov_b32 m0, s48")
        e("s_nop 0")
        e("buffer_load_dwordx4 v%d, s[8:11], s47 offen lds" % (V_DMA+u))
dma(0); dma(1); dma(2)
e("v_and_b32 v%d, 15, v%d" % (V_T0, V_LANE))
e("v_lshrrev_b32 v%d, 2, v%d" % (V_T1, V_T0))
e("v_lshl_add_u32 v%d, v%d, 3, v%d" % (V_T1, V_H, V_T1))
e("v_mul_u32_u24 v%d, 320, v%d" % (V_T1, V_T1))
e("v_and_b32 v%d, 3, v%d" % (V_T0, V_T0))
e("v_lshl_add_u32 v%d, v%d, 3, v%d" % (V_T1, V_T0, V_T1))
e("v_bfe_u32 v%d, v%d, 4, 1" % (V_T0, V_LANE))
e("v_lshl_add_u32 v%d, v%d, 5, v%d" % (V_T1, V_T0, V_T1))
e("s_mul_i32 s%d, s%d, 20480" % (S_T0, S_KH))
e("s_add_u32 s%d, s%d, %d" % (S_T0, S_T0, LDS_RING))
e("v_add_u32 v%d, s%d, v%d" % (V_LB, S_T0, V_T1))
e("v_add_u32 v%d, %d, v%d" % (V_LB+1, SLOT, V_LB))
e("v_add_u32 v%d, %d, v%d" % (V_LB+2, 2*SLOT, V_LB))
e("s_waitcnt vmcnt(35)")
e("v_cmp_gt_u32 vcc, 320, v%d" % V_TID)
e("s_and_saveexec_b64 s[50:51], vcc")
e("s_cbranch_execz L_gb_done")
e("v_lshlrev_b32 v%d, 3, v%d" % (V_T0, V_TID))
e("v_lshlrev_b32 v%d, 16, v%d" % (V_T1, V_G))
e("v_and_b32 v%d, 0xffff0000, v%d" % (V_T2, V_G))
e("ds_write_b64 v%d, v[%d:%d] offset:%d" % (V_T0, V_T1, V_T2, LDS_GB))
e("v_lshlrev_b32 v%d, 16, v%d" % (V_T1, V_B))
e("v_and_b32 v%d, 0xffff0000, v%d" % (V_T2, V_B))
e("ds_write_b64 v%d, v[%d:%d] offset:%d" % (V_T0, V_T1, V_T2, LDS_GB+2560))
lab("L_gb_done")
e("s_mov_b64 exec, s[50:51]")
e("s_waitcnt vmcnt(15)")
e("v_mov_b32 v%d, 0" % V_SUM)
e("v_mov_b32 v%d, 0" % V_SQ)
e("s_mov_b32 s49, 0x3f803f80")
for i in range(80):
    e("v_dot2_f32_bf16 v%d, v%d, s49, v%d" % (V_SUM, XA+i, V_SUM))
    e("v_dot2_f32_bf16 v%d, v%d, v%d, v%d" % (V_SQ, XA+i, XA+i, V_SQ))
e("v_and_b32 v%d, 31, v%d" % (V_T0, V_LANE))
e("s_lshl_b32 s%d, s%d, 5" % (S_T0, S_RB))
e("v_add_u32 v%d, s%d, v%d" % (V_T0, S_T0, V_T0))
e("v_lshlrev_b32 v%d, 5, v%d" % (V_STA, V_T0))
e("s_lshl_b32 s%d, s%d, 4" % (S_T0, S_KH))
e("v_lshl_add_u32 v%d, v%d, 3, s%d" % (V_T0, V_H, S_T0))
e("v_add_u32 v%d, v%d, v%d" % (V_T0, V_T0, V_STA))
e("ds_write_b64 v%d, v[%d:%d] offset:%d" % (V_T0, V_SUM, V_SQ, LDS_ST))
e("s_waitcnt lgkmcnt(0)")
e("s_barrier")
e("ds_read_b128 v[%d:%d], v%d offset:%d" % (TMP, TMP+3, V_STA, LDS_ST))
e("ds_read_b128 v[%d:%d], v%d offset:%d" % (TMP+4, TMP+7, V_STA, LDS_ST+16))
e("s_waitcnt lgkmcnt(0)")
e("v_add_f32 v%d, v%d, v%d" % (V_SUM, TMP, TMP+2))
e("v_add_f32 v%d, v%d, v%d" % (V_T0, TMP+4, TMP+6))
e("v_add_f32 v%d, v%d, v%d" % (V_SUM, V_SUM, V_T0))
e("v_add_f32 v%d, v%d, v%d" % (V_SQ, TMP+1, TMP+3))
e("v_add_f32 v%d, v%d, v%d" % (V_T0, TMP+5, TMP+7))
e("v_add_f32 v%d, v%d, v%d" % (V_SQ, V_SQ, V_T0))
e("v_mul_f32 v%d, 0x3acccccd, v%d" % (V_SUM, V_SUM))
e("v_mul_f32 v%d, 0x3acccccd, v%d" % (V_SQ, V_SQ))
e("v_fma_f32 v%d, -v%d, v%d, v%d" % (V_SQ, V_SUM, V_SUM, V_SQ))
e("v_max_f32 v%d, 0, v%d" % (V_SQ, V_SQ))
e("v_add_f32 v%d, 0x3727c5ac, v%d" % (V_SQ, V_SQ))
e("v_rsq_f32 v%d, v%d" % (V_RS, V_SQ))
e("s_nop 0")
e("v_mul_f32 v%d, v%d, v%d" % (V_NM, V_SUM, V_RS))
e("v_sub_f32 v%d, 0, v%d" % (V_NM, V_NM))
e("s_mul_i32 s%d, s%d, 1280" % (S_T0, S_KH))
e("v_lshl_add_u32 v%d, v%d, 5, s%d" % (V_GBA, V_H, S_T0))
for s in range(20):
    e("ds_read_b128 v[%d:%d], v%d offset:%d" % (TMP, TMP+3, V_GBA, LDS_GB + 64*s))
    e("ds_read_b128 v[%d:%d], v%d offset:%d" % (TMP+4, TMP+7, V_GBA, LDS_GB + 64*s + 16))
    e("ds_read_b128 v[%d:%d], v%d offset:%d" % (TMP+8, TMP+11, V_GBA, LDS_GB + 2560 + 64*s))
    e("ds_read_b128 v[%d:%d], v%d offset:%d" % (TMP+12, TMP+15, V_GBA, LDS_GB + 2560 + 64*s + 16))
    e("s_waitcnt lgkmcnt(0)")
    for d in range(4):
        R = XA + 4*s + d
        e("v_lshlrev_b32 v%d, 16, v%d" % (V_T0, R))
        e("v_and_b32 v%d, 0xffff0000, v%d" % (V_T1, R))
        e("v_fma_f32 v%d, v%d, v%d, v%d" % (V_T0, V_T0, V_RS, V_NM))
        e("v_fma_f32 v%d, v%d, v%d, v%d" % (V_T1, V_T1, V_RS, V_NM))
        e("v_fma_f32 v%d, v%d, v%d, v%d" % (V_T0, V_T0, TMP+2*d, TMP+8+2*d))
        e("v_fma_f32 v%d, v%d, v%d, v%d" % (V_T1, V_T1, TMP+2*d+1, TMP+8+2*d+1))
        e("v_cvt_pk_bf16_f32 v%d, v%d, v%d" % (R, V_T0, V_T1))
def trreads(slot, ks, buf):
    for t in range(5):
        for q in range(2):
            off = (16*ks + 4*q)*320 + 64*t
            r = BF + buf*20 + 4*t + 2*q
            e("ds_read_b64_tr_b16 v[%d:%d], v%d offset:%d" % (r, r+1, V_LB+slot, off))
for j in range(5):
    slot = j % 3
    e("s_waitcnt vmcnt(%d)" % (10 if j == 0 else (5 if j < 4 else 0)))
    e("s_barrier")
    trreads(slot, 0, 0)
    if j in (1, 2):
        dma(j+2)
    for ks in range(4):
        buf = ks & 1
        if ks < 3:
            trreads(slot, ks+1, buf ^ 1)
            e("s_waitcnt lgkmcnt(10)")
        else:
            e("s_waitcnt lgkmcnt(0)")
        s = 4*j + ks
        for t in range(5):
            a = ACC + 16*t
            c = ("v[%d:%d]" % (a, a+15)) if s > 0 else "0"
            e("v_mfma_f32_32x32x16_bf16 v[%d:%d], v[%d:%d], v[%d:%d], %s" %
              (a, a+15, BF+buf*20+4*t, BF+buf*20+4*t+3, XA+4*s, XA+4*s+3, c))
e("s_nop 15")
e("s_nop 3")
e("s_barrier")
e("v_lshlrev_b32 v%d, 4, v%d" % (V_EP, V_LANE))
e("s_mul_i32 s%d, s%d, 20480" % (S_T0, S_RB))
e("s_add_u32 s%d, s%d, %d" % (S_T0, S_T0, LDS_RING))
e("v_add_u32 v%d, s%d, v%d" % (V_EP, S_T0, V_EP))
e("s_cmp_eq_u32 s%d, 0" % S_KH)
e("s_cbranch_scc1 L_ep_lo")
for i in range(20):
    e("ds_write_b128 v%d, v[%d:%d] offset:%d" % (V_EP, ACC+4*i, ACC+4*i+3, 1024*i))
e("s_waitcnt lgkmcnt(0)")
e("s_barrier")
e("s_branch L_end")
lab("L_ep_lo")
e("s_barrier")
e("s_mul_i32 s%d, s%d, 320" % (S_T0, S_NS))
e("v_add_u32 v%d, s%d, v%d" % (V_OOFF, S_T0, V_OOFF))
e("v_lshl_add_u32 v%d, v%d, 3, v%d" % (V_OOFF, V_H, V_OOFF))
for t in range(5):
    for q in range(4):
        i = 4*t + q
        e("ds_read_b128 v[%d:%d], v%d offset:%d" % (BF+4*q, BF+4*q+3, V_EP, 1024*i))
    e("s_waitcnt lgkmcnt(0)")
    for q in range(4):
        a = ACC + 16*t + 4*q
        for z in range(4):
            e("v_add_f32 v%d, v%d, v%d" % (a+z, a+z, BF+4*q+z))
        e("v_cvt_pk_bf16_f32 v%d, v%d, v%d" % (BF+20+2*q, a, a+1))
        e("v_cvt_pk_bf16_f32 v%d, v%d, v%d" % (BF+20+2*q+1, a+2, a+3))
        e("buffer_store_dwordx2 v[%d:%d], v%d, s[12:15], 0 offen offset:%d" % (BF+20+2*q, BF+20+2*q+1, V_OOFF, 64*t+16*q))
lab("L_end")
e("s_endpgm")

body = "\n".join(L)
out = HDR + """; Override launch geometry by editing the next line.
; @launch grid=(256,1,1) block=(512,1,1) lds=%d
.amdgcn_target "amdgcn-amd-amdhsa--gfx950"
.text
.globl standalone__layernorm_linear__sampling_kernel
.p2align 8
.type standalone__layernorm_linear__sampling_kernel,@function
standalone__layernorm_linear__sampling_kernel:
%s
.section .rodata,"a"
.p2align 6
.amdhsa_kernel standalone__layernorm_linear__sampling_kernel
  .amdhsa_next_free_vgpr %d
  .amdhsa_next_free_sgpr 64
  .amdhsa_accum_offset %d
  .amdhsa_group_segment_fixed_size 0
  .amdhsa_kernarg_size 56
  .amdhsa_user_sgpr_count 2
  .amdhsa_user_sgpr_kernarg_segment_ptr 1
  .amdhsa_system_sgpr_workgroup_id_x 1
.end_amdhsa_kernel
""" % (LDS_TOTAL, body, NVGPR, NVGPR)
open(sys.argv[1] if len(sys.argv) > 1 else 'standalone__layernorm_linear__sampling.s', 'w').write(out)
```

```python
import sys

L = []
def e(s): L.append("    " + s)
def lab(s): L.append(s + ":")

HDR = open('standalone__layernorm_linear__sampling.s.ref').read().split('; Override')[0]

SLOT = 40960
LDS_GB = 0
LDS_ST = LDS_GB + 5120
LDS_RING = LDS_ST + 4096
LDS_TOTAL = LDS_RING + 3 * SLOT

S_MT, S_NS, S_W, S_KH, S_RB, S_T0, S_T1 = 24, 25, 26, 27, 28, 29, 30

XA = 0
ACC = 80
BF = 160
TMP = 200
V_LANE, V_XOFF, V_H, V_T0, V_T1, V_T2, V_T3 = 216, 217, 218, 219, 220, 221, 222
V_DMA = 223
V_LB = 228
V_SUM, V_SQ, V_RS, V_NM = 232, 233, 234, 231
V_STA, V_GBA, V_OOFF, V_EP = 235, 236, 237, 238
V_G, V_B = 239, 240
V_TID = 241
NVGPR = 244

e("s_cmp_ge_u32 s2, 256")
e("s_cbranch_scc1 L_end")
e("s_memtime s[52:53]")
e("s_load_dwordx2 s[42:43], s[0:1], 40")
e("s_load_dwordx4 s[32:35], s[0:1], 0")
e("s_load_dwordx4 s[36:39], s[0:1], 16")
e("s_load_dwordx2 s[40:41], s[0:1], 32")
e("s_and_b32 s%d, s2, 7" % S_T0)
e("s_lshr_b32 s%d, s2, 3" % S_T1)
e("s_and_b32 s%d, s%d, 3" % (S_NS, S_T1))
e("s_lshr_b32 s%d, s%d, 2" % (S_T1, S_T1))
e("s_lshl_b32 s%d, s%d, 3" % (S_MT, S_T0))
e("s_add_u32 s%d, s%d, s%d" % (S_MT, S_MT, S_T1))
e("v_mov_b32 v%d, v0" % V_TID)
e("v_and_b32 v%d, 63, v0" % V_LANE)
e("v_lshrrev_b32 v%d, 6, v0" % V_T0)
e("s_nop 0")
e("v_readfirstlane_b32 s%d, v%d" % (S_W, V_T0))
e("s_nop 3")
e("s_and_b32 s%d, s%d, 3" % (S_RB, S_W))
e("s_lshr_b32 s%d, s%d, 2" % (S_KH, S_W))
e("s_waitcnt lgkmcnt(0)")
def srd(d, lo, hi, n):
    e("s_mov_b32 s%d, s%d" % (d, lo))
    e("s_and_b32 s%d, s%d, 0xffff" % (d+1, hi))
    e("s_mov_b32 s%d, %d" % (d+2, n))
    e("s_mov_b32 s%d, 0x00020000" % (d+3))
srd(4, 32, 33, 10485760)
srd(16, 34, 35, 1280)
srd(20, 36, 37, 1280)
srd(8, 38, 39, 819200)
srd(12, 40, 41, 10485760)
e("v_lshlrev_b32 v%d, 2, v0" % V_T1)
e("buffer_load_dword v%d, v%d, s[16:19], 0 offen" % (V_G, V_T1))
e("buffer_load_dword v%d, v%d, s[20:23], 0 offen" % (V_B, V_T1))
e("v_and_b32 v%d, 31, v%d" % (V_T0, V_LANE))
e("v_lshrrev_b32 v%d, 5, v%d" % (V_H, V_LANE))
e("s_lshl_b32 s%d, s%d, 7" % (S_T0, S_MT))
e("s_lshl_b32 s%d, s%d, 5" % (S_T1, S_RB))
e("s_add_u32 s%d, s%d, s%d" % (S_T0, S_T0, S_T1))
e("v_add_u32 v%d, s%d, v%d" % (V_T0, S_T0, V_T0))
e("s_movk_i32 s%d, 1280" % S_T1)
e("v_mul_lo_u32 v%d, v%d, s%d" % (V_XOFF, V_T0, S_T1))
e("v_mov_b32 v%d, v%d" % (V_OOFF, V_XOFF))
e("s_mul_i32 s%d, s%d, 640" % (S_T1, S_KH))
e("v_add_u32 v%d, s%d, v%d" % (V_XOFF, S_T1, V_XOFF))
e("v_lshl_add_u32 v%d, v%d, 4, v%d" % (V_XOFF, V_H, V_XOFF))
for s in range(20):
    e("buffer_load_dwordx4 v[%d:%d], v%d, s[4:7], 0 offen offset:%d" % (XA+4*s, XA+4*s+3, V_XOFF, 32*s))
e("s_mul_i32 s%d, s%d, 320" % (S_T0, S_W))
e("s_mul_i32 s%d, s%d, 320" % (S_T1, S_NS))
e("s_movk_i32 s44, 3277")
e("s_movk_i32 s45, 1280")
for u in range(5):
    e("v_add_u32 v%d, s%d, v%d" % (V_T0, S_T0, V_LANE))
    if u: e("v_add_u32 v%d, %d, v%d" % (V_T0, 64*u, V_T0))
    e("v_mul_lo_u32 v%d, v%d, s44" % (V_T1, V_T0))
    e("v_lshrrev_b32 v%d, 16, v%d" % (V_T1, V_T1))
    e("v_mul_u32_u24 v%d, 20, v%d" % (V_T2, V_T1))
    e("v_sub_u32 v%d, v%d, v%d" % (V_T2, V_T0, V_T2))
    e("v_lshrrev_b32 v%d, 6, v%d" % (V_T3, V_T1))
    e("v_mul_u32_u24 v%d, 320, v%d" % (V_T3, V_T3))
    e("v_and_b32 v%d, 63, v%d" % (V_T1, V_T1))
    e("v_add_u32 v%d, v%d, v%d" % (V_T1, V_T1, V_T3))
    e("v_mul_lo_u32 v%d, v%d, s45" % (V_T1, V_T1))
    e("v_lshl_add_u32 v%d, v%d, 4, v%d" % (V_T1, V_T2, V_T1))
    e("v_add_u32 v%d, s%d, v%d" % (V_DMA+u, S_T1, V_T1))
e("s_mul_i32 s46, s%d, 5120" % S_W)
def dma(stage):
    slot = stage % 3
    e("s_mov_b32 s47, %d" % (stage*81920))
    for u in range(5):
        e("s_add_u32 s48, s46, %d" % (LDS_RING + slot*SLOT + u*1024))
        e("s_mov_b32 m0, s48")
        e("s_nop 0")
        e("buffer_load_dwordx4 v%d, s[8:11], s47 offen lds" % (V_DMA+u))
dma(0); dma(1); dma(2)
e("v_and_b32 v%d, 15, v%d" % (V_T0, V_LANE))
e("v_lshrrev_b32 v%d, 2, v%d" % (V_T1, V_T0))
e("v_lshl_add_u32 v%d, v%d, 3, v%d" % (V_T1, V_H, V_T1))
e("v_mul_u32_u24 v%d, 320, v%d" % (V_T1, V_T1))
e("v_and_b32 v%d, 3, v%d" % (V_T0, V_T0))
e("v_lshl_add_u32 v%d, v%d, 3, v%d" % (V_T1, V_T0, V_T1))
e("v_bfe_u32 v%d, v%d, 4, 1" % (V_T0, V_LANE))
e("v_lshl_add_u32 v%d, v%d, 5, v%d" % (V_T1, V_T0, V_T1))
e("s_mul_i32 s%d, s%d, 20480" % (S_T0, S_KH))
e("s_add_u32 s%d, s%d, %d" % (S_T0, S_T0, LDS_RING))
e("v_add_u32 v%d, s%d, v%d" % (V_LB, S_T0, V_T1))
e("v_add_u32 v%d, %d, v%d" % (V_LB+1, SLOT, V_LB))
e("v_add_u32 v%d, %d, v%d" % (V_LB+2, 2*SLOT, V_LB))
e("s_waitcnt vmcnt(35)")
e("v_cmp_gt_u32 vcc, 320, v%d" % V_TID)
e("s_and_saveexec_b64 s[50:51], vcc")
e("s_cbranch_execz L_gb_done")
e("v_lshlrev_b32 v%d, 3, v%d" % (V_T0, V_TID))
e("v_lshlrev_b32 v%d, 16, v%d" % (V_T1, V_G))
e("v_and_b32 v%d, 0xffff0000, v%d" % (V_T2, V_G))
e("ds_write_b64 v%d, v[%d:%d] offset:%d" % (V_T0, V_T1, V_T2, LDS_GB))
e("v_lshlrev_b32 v%d, 16, v%d" % (V_T1, V_B))
e("v_and_b32 v%d, 0xffff0000, v%d" % (V_T2, V_B))
e("ds_write_b64 v%d, v[%d:%d] offset:%d" % (V_T0, V_T1, V_T2, LDS_GB+2560))
lab("L_gb_done")
e("s_mov_b64 exec, s[50:51]")
e("s_waitcnt vmcnt(15)")
e("s_memtime s[54:55]")
e("v_mov_b32 v%d, 0" % V_SUM)
e("v_mov_b32 v%d, 0" % V_SQ)
e("s_mov_b32 s49, 0x3f803f80")
for i in range(80):
    e("v_dot2_f32_bf16 v%d, v%d, s49, v%d" % (V_SUM, XA+i, V_SUM))
    e("v_dot2_f32_bf16 v%d, v%d, v%d, v%d" % (V_SQ, XA+i, XA+i, V_SQ))
e("v_and_b32 v%d, 31, v%d" % (V_T0, V_LANE))
e("s_lshl_b32 s%d, s%d, 5" % (S_T0, S_RB))
e("v_add_u32 v%d, s%d, v%d" % (V_T0, S_T0, V_T0))
e("v_lshlrev_b32 v%d, 5, v%d" % (V_STA, V_T0))
e("s_lshl_b32 s%d, s%d, 4" % (S_T0, S_KH))
e("v_lshl_add_u32 v%d, v%d, 3, s%d" % (V_T0, V_H, S_T0))
e("v_add_u32 v%d, v%d, v%d" % (V_T0, V_T0, V_STA))
e("ds_write_b64 v%d, v[%d:%d] offset:%d" % (V_T0, V_SUM, V_SQ, LDS_ST))
e("s_waitcnt lgkmcnt(0)")
e("s_barrier")
e("s_memtime s[56:57]")
e("ds_read_b128 v[%d:%d], v%d offset:%d" % (TMP, TMP+3, V_STA, LDS_ST))
e("ds_read_b128 v[%d:%d], v%d offset:%d" % (TMP+4, TMP+7, V_STA, LDS_ST+16))
e("s_waitcnt lgkmcnt(0)")
e("v_add_f32 v%d, v%d, v%d" % (V_SUM, TMP, TMP+2))
e("v_add_f32 v%d, v%d, v%d" % (V_T0, TMP+4, TMP+6))
e("v_add_f32 v%d, v%d, v%d" % (V_SUM, V_SUM, V_T0))
e("v_add_f32 v%d, v%d, v%d" % (V_SQ, TMP+1, TMP+3))
e("v_add_f32 v%d, v%d, v%d" % (V_T0, TMP+5, TMP+7))
e("v_add_f32 v%d, v%d, v%d" % (V_SQ, V_SQ, V_T0))
e("v_mul_f32 v%d, 0x3acccccd, v%d" % (V_SUM, V_SUM))
e("v_mul_f32 v%d, 0x3acccccd, v%d" % (V_SQ, V_SQ))
e("v_fma_f32 v%d, -v%d, v%d, v%d" % (V_SQ, V_SUM, V_SUM, V_SQ))
e("v_max_f32 v%d, 0, v%d" % (V_SQ, V_SQ))
e("v_add_f32 v%d, 0x3727c5ac, v%d" % (V_SQ, V_SQ))
e("v_rsq_f32 v%d, v%d" % (V_RS, V_SQ))
e("s_nop 0")
e("v_mul_f32 v%d, v%d, v%d" % (V_NM, V_SUM, V_RS))
e("v_sub_f32 v%d, 0, v%d" % (V_NM, V_NM))
e("s_mul_i32 s%d, s%d, 1280" % (S_T0, S_KH))
e("v_lshl_add_u32 v%d, v%d, 5, s%d" % (V_GBA, V_H, S_T0))
for s in range(20):
    e("ds_read_b128 v[%d:%d], v%d offset:%d" % (TMP, TMP+3, V_GBA, LDS_GB + 64*s))
    e("ds_read_b128 v[%d:%d], v%d offset:%d" % (TMP+4, TMP+7, V_GBA, LDS_GB + 64*s + 16))
    e("ds_read_b128 v[%d:%d], v%d offset:%d" % (TMP+8, TMP+11, V_GBA, LDS_GB + 2560 + 64*s))
    e("ds_read_b128 v[%d:%d], v%d offset:%d" % (TMP+12, TMP+15, V_GBA, LDS_GB + 2560 + 64*s + 16))
    e("s_waitcnt lgkmcnt(0)")
    for d in range(4):
        R = XA + 4*s + d
        e("v_lshlrev_b32 v%d, 16, v%d" % (V_T0, R))
        e("v_and_b32 v%d, 0xffff0000, v%d" % (V_T1, R))
        e("v_fma_f32 v%d, v%d, v%d, v%d" % (V_T0, V_T0, V_RS, V_NM))
        e("v_fma_f32 v%d, v%d, v%d, v%d" % (V_T1, V_T1, V_RS, V_NM))
        e("v_fma_f32 v%d, v%d, v%d, v%d" % (V_T0, V_T0, TMP+2*d, TMP+8+2*d))
        e("v_fma_f32 v%d, v%d, v%d, v%d" % (V_T1, V_T1, TMP+2*d+1, TMP+8+2*d+1))
        e("v_cvt_pk_bf16_f32 v%d, v%d, v%d" % (R, V_T0, V_T1))
e("s_memtime s[58:59]")
def trreads(slot, ks, buf):
    for t in range(5):
        for q in range(2):
            off = (16*ks + 4*q)*320 + 64*t
            r = BF + buf*20 + 4*t + 2*q
            e("ds_read_b64_tr_b16 v[%d:%d], v%d offset:%d" % (r, r+1, V_LB+slot, off))
for j in range(5):
    slot = j % 3
    e("s_waitcnt vmcnt(%d)" % (10 if j == 0 else (5 if j < 4 else 0)))
    e("s_barrier")
    trreads(slot, 0, 0)
    if j in (1, 2):
        dma(j+2)
    for ks in range(4):
        buf = ks & 1
        if ks < 3:
            trreads(slot, ks+1, buf ^ 1)
            e("s_waitcnt lgkmcnt(10)")
        else:
            e("s_waitcnt lgkmcnt(0)")
        s = 4*j + ks
        for t in range(5):
            a = ACC + 16*t
            c = ("v[%d:%d]" % (a, a+15)) if s > 0 else "0"
            e("v_mfma_f32_32x32x16_bf16 v[%d:%d], v[%d:%d], v[%d:%d], %s" %
              (a, a+15, BF+buf*20+4*t, BF+buf*20+4*t+3, XA+4*s, XA+4*s+3, c))
e("s_memtime s[60:61]")
e("s_nop 15")
e("s_nop 3")
e("s_barrier")
e("v_lshlrev_b32 v%d, 4, v%d" % (V_EP, V_LANE))
e("s_mul_i32 s%d, s%d, 20480" % (S_T0, S_RB))
e("s_add_u32 s%d, s%d, %d" % (S_T0, S_T0, LDS_RING))
e("v_add_u32 v%d, s%d, v%d" % (V_EP, S_T0, V_EP))
e("s_cmp_eq_u32 s%d, 0" % S_KH)
e("s_cbranch_scc1 L_ep_lo")
for i in range(20):
    e("ds_write_b128 v%d, v[%d:%d] offset:%d" % (V_EP, ACC+4*i, ACC+4*i+3, 1024*i))
e("s_waitcnt lgkmcnt(0)")
e("s_barrier")
e("s_branch L_end")
lab("L_ep_lo")
e("s_barrier")
e("s_mul_i32 s%d, s%d, 320" % (S_T0, S_NS))
e("v_add_u32 v%d, s%d, v%d" % (V_OOFF, S_T0, V_OOFF))
e("v_lshl_add_u32 v%d, v%d, 3, v%d" % (V_OOFF, V_H, V_OOFF))
for t in range(5):
    for q in range(4):
        i = 4*t + q
        e("ds_read_b128 v[%d:%d], v%d offset:%d" % (BF+4*q, BF+4*q+3, V_EP, 1024*i))
    e("s_waitcnt lgkmcnt(0)")
    for q in range(4):
        a = ACC + 16*t + 4*q
        for z in range(4):
            e("v_add_f32 v%d, v%d, v%d" % (a+z, a+z, BF+4*q+z))
        e("v_cvt_pk_bf16_f32 v%d, v%d, v%d" % (BF+20+2*q, a, a+1))
        e("v_cvt_pk_bf16_f32 v%d, v%d, v%d" % (BF+20+2*q+1, a+2, a+3))
        e("buffer_store_dwordx2 v[%d:%d], v%d, s[12:15], 0 offen offset:%d" % (BF+20+2*q, BF+20+2*q+1, V_OOFF, 64*t+16*q))
e("s_waitcnt vmcnt(0)")
e("s_memtime s[62:63]")
e("s_cmp_lg_u32 s2, 0")
e("s_cbranch_scc1 L_end")
e("s_cmp_lg_u32 s%d, 0" % S_W)
e("s_cbranch_scc1 L_end")
e("s_waitcnt lgkmcnt(0)")
e("s_mov_b32 s44, s42")
e("s_and_b32 s45, s43, 0xffff")
e("s_mov_b32 s46, 256")
e("s_mov_b32 s47, 0x00020000")
e("v_mov_b32 v1, 0")
for i in range(6):
    e("s_sub_u32 s48, s%d, s52" % (52+2*i))
    e("v_mov_b32 v2, s48")
    e("buffer_store_dword v2, v1, s[44:47], 0 offen offset:%d" % (4*i))
e("s_waitcnt vmcnt(0)")
lab("L_end")
e("s_endpgm")

body = "\n".join(L)
out = HDR + """; Override launch geometry by editing the next line.
; @launch grid=(256,1,1) block=(512,1,1) lds=%d
.amdgcn_target "amdgcn-amd-amdhsa--gfx950"
.text
.globl standalone__layernorm_linear__sampling_kernel
.p2align 8
.type standalone__layernorm_linear__sampling_kernel,@function
standalone__layernorm_linear__sampling_kernel:
%s
.section .rodata,"a"
.p2align 6
.amdhsa_kernel standalone__layernorm_linear__sampling_kernel
  .amdhsa_next_free_vgpr %d
  .amdhsa_next_free_sgpr 64
  .amdhsa_accum_offset %d
  .amdhsa_group_segment_fixed_size 0
  .amdhsa_kernarg_size 56
  .amdhsa_user_sgpr_count 2
  .amdhsa_user_sgpr_kernarg_segment_ptr 1
  .amdhsa_system_sgpr_workgroup_id_x 1
.end_amdhsa_kernel
""" % (LDS_TOTAL, body, NVGPR, NVGPR)
open(sys.argv[1] if len(sys.argv) > 1 else 'standalone__layernorm_linear__sampling.s', 'w').write(out)
```

```python
import sys

L = []
def e(s): L.append("    " + s)
def lab(s): L.append(s + ":")

HDR = open('standalone__layernorm_linear__sampling.s.ref').read().split('; Override')[0]

SLOT = 40960
LDS_GB = 0
LDS_ST = LDS_GB + 5120
LDS_RING = LDS_ST + 4096
LDS_TOTAL = LDS_RING + 3 * SLOT

S_MT, S_NS, S_W, S_KH, S_RB, S_T0, S_T1 = 24, 25, 26, 27, 28, 29, 30

XA = 0
ACC = 80
BF = 160
TMP = 200
V_LANE, V_XOFF, V_H, V_T0, V_T1, V_T2, V_T3 = 216, 217, 218, 219, 220, 221, 222
V_DMA = 223
V_LB = 228
V_SUM, V_SQ, V_RS, V_NM = 232, 233, 234, 231
V_STA, V_GBA, V_OOFF, V_EP = 235, 236, 237, 238
V_G, V_B = 239, 240
V_TID = 241
NVGPR = 244

e("s_cmp_ge_u32 s2, 256")
e("s_cbranch_scc1 L_end")
e("s_memtime s[52:53]")
e("s_memrealtime s[64:65]")
e("s_load_dwordx2 s[42:43], s[0:1], 40")
e("s_load_dwordx4 s[32:35], s[0:1], 0")
e("s_load_dwordx4 s[36:39], s[0:1], 16")
e("s_load_dwordx2 s[40:41], s[0:1], 32")
e("s_and_b32 s%d, s2, 7" % S_T0)
e("s_lshr_b32 s%d, s2, 3" % S_T1)
e("s_and_b32 s%d, s%d, 3" % (S_NS, S_T1))
e("s_lshr_b32 s%d, s%d, 2" % (S_T1, S_T1))
e("s_lshl_b32 s%d, s%d, 3" % (S_MT, S_T0))
e("s_add_u32 s%d, s%d, s%d" % (S_MT, S_MT, S_T1))
e("v_mov_b32 v%d, v0" % V_TID)
e("v_and_b32 v%d, 63, v0" % V_LANE)
e("v_lshrrev_b32 v%d, 6, v0" % V_T0)
e("s_nop 0")
e("v_readfirstlane_b32 s%d, v%d" % (S_W, V_T0))
e("s_nop 3")
e("s_and_b32 s%d, s%d, 3" % (S_RB, S_W))
e("s_lshr_b32 s%d, s%d, 2" % (S_KH, S_W))
e("s_waitcnt lgkmcnt(0)")
def srd(d, lo, hi, n):
    e("s_mov_b32 s%d, s%d" % (d, lo))
    e("s_and_b32 s%d, s%d, 0xffff" % (d+1, hi))
    e("s_mov_b32 s%d, %d" % (d+2, n))
    e("s_mov_b32 s%d, 0x00020000" % (d+3))
srd(4, 32, 33, 10485760)
srd(16, 34, 35, 1280)
srd(20, 36, 37, 1280)
srd(8, 38, 39, 819200)
srd(12, 40, 41, 10485760)
e("v_lshlrev_b32 v%d, 2, v0" % V_T1)
e("buffer_load_dword v%d, v%d, s[16:19], 0 offen" % (V_G, V_T1))
e("buffer_load_dword v%d, v%d, s[20:23], 0 offen" % (V_B, V_T1))
e("v_and_b32 v%d, 31, v%d" % (V_T0, V_LANE))
e("v_lshrrev_b32 v%d, 5, v%d" % (V_H, V_LANE))
e("s_lshl_b32 s%d, s%d, 7" % (S_T0, S_MT))
e("s_lshl_b32 s%d, s%d, 5" % (S_T1, S_RB))
e("s_add_u32 s%d, s%d, s%d" % (S_T0, S_T0, S_T1))
e("v_add_u32 v%d, s%d, v%d" % (V_T0, S_T0, V_T0))
e("s_movk_i32 s%d, 1280" % S_T1)
e("v_mul_lo_u32 v%d, v%d, s%d" % (V_XOFF, V_T0, S_T1))
e("v_mov_b32 v%d, v%d" % (V_OOFF, V_XOFF))
e("s_mul_i32 s%d, s%d, 640" % (S_T1, S_KH))
e("v_add_u32 v%d, s%d, v%d" % (V_XOFF, S_T1, V_XOFF))
e("v_lshl_add_u32 v%d, v%d, 4, v%d" % (V_XOFF, V_H, V_XOFF))
for s in range(20):
    e("buffer_load_dwordx4 v[%d:%d], v%d, s[4:7], 0 offen offset:%d" % (XA+4*s, XA+4*s+3, V_XOFF, 32*s))
e("s_mul_i32 s%d, s%d, 320" % (S_T0, S_W))
e("s_mul_i32 s%d, s%d, 320" % (S_T1, S_NS))
e("s_movk_i32 s44, 3277")
e("s_movk_i32 s45, 1280")
for u in range(5):
    e("v_add_u32 v%d, s%d, v%d" % (V_T0, S_T0, V_LANE))
    if u: e("v_add_u32 v%d, %d, v%d" % (V_T0, 64*u, V_T0))
    e("v_mul_lo_u32 v%d, v%d, s44" % (V_T1, V_T0))
    e("v_lshrrev_b32 v%d, 16, v%d" % (V_T1, V_T1))
    e("v_mul_u32_u24 v%d, 20, v%d" % (V_T2, V_T1))
    e("v_sub_u32 v%d, v%d, v%d" % (V_T2, V_T0, V_T2))
    e("v_lshrrev_b32 v%d, 6, v%d" % (V_T3, V_T1))
    e("v_mul_u32_u24 v%d, 320, v%d" % (V_T3, V_T3))
    e("v_and_b32 v%d, 63, v%d" % (V_T1, V_T1))
    e("v_add_u32 v%d, v%d, v%d" % (V_T1, V_T1, V_T3))
    e("v_mul_lo_u32 v%d, v%d, s45" % (V_T1, V_T1))
    e("v_lshl_add_u32 v%d, v%d, 4, v%d" % (V_T1, V_T2, V_T1))
    e("v_add_u32 v%d, s%d, v%d" % (V_DMA+u, S_T1, V_T1))
e("s_mul_i32 s46, s%d, 5120" % S_W)
def dma(stage):
    slot = stage % 3
    e("s_mov_b32 s47, %d" % (stage*81920))
    for u in range(5):
        e("s_add_u32 s48, s46, %d" % (LDS_RING + slot*SLOT + u*1024))
        e("s_mov_b32 m0, s48")
        e("s_nop 0")
        e("buffer_load_dwordx4 v%d, s[8:11], s47 offen lds" % (V_DMA+u))
dma(0); dma(1); dma(2)
e("v_and_b32 v%d, 15, v%d" % (V_T0, V_LANE))
e("v_lshrrev_b32 v%d, 2, v%d" % (V_T1, V_T0))
e("v_lshl_add_u32 v%d, v%d, 3, v%d" % (V_T1, V_H, V_T1))
e("v_mul_u32_u24 v%d, 320, v%d" % (V_T1, V_T1))
e("v_and_b32 v%d, 3, v%d" % (V_T0, V_T0))
e("v_lshl_add_u32 v%d, v%d, 3, v%d" % (V_T1, V_T0, V_T1))
e("v_bfe_u32 v%d, v%d, 4, 1" % (V_T0, V_LANE))
e("v_lshl_add_u32 v%d, v%d, 5, v%d" % (V_T1, V_T0, V_T1))
e("s_mul_i32 s%d, s%d, 20480" % (S_T0, S_KH))
e("s_add_u32 s%d, s%d, %d" % (S_T0, S_T0, LDS_RING))
e("v_add_u32 v%d, s%d, v%d" % (V_LB, S_T0, V_T1))
e("v_add_u32 v%d, %d, v%d" % (V_LB+1, SLOT, V_LB))
e("v_add_u32 v%d, %d, v%d" % (V_LB+2, 2*SLOT, V_LB))
e("s_waitcnt vmcnt(35)")
e("v_cmp_gt_u32 vcc, 320, v%d" % V_TID)
e("s_and_saveexec_b64 s[50:51], vcc")
e("s_cbranch_execz L_gb_done")
e("v_lshlrev_b32 v%d, 3, v%d" % (V_T0, V_TID))
e("v_lshlrev_b32 v%d, 16, v%d" % (V_T1, V_G))
e("v_and_b32 v%d, 0xffff0000, v%d" % (V_T2, V_G))
e("ds_write_b64 v%d, v[%d:%d] offset:%d" % (V_T0, V_T1, V_T2, LDS_GB))
e("v_lshlrev_b32 v%d, 16, v%d" % (V_T1, V_B))
e("v_and_b32 v%d, 0xffff0000, v%d" % (V_T2, V_B))
e("ds_write_b64 v%d, v[%d:%d] offset:%d" % (V_T0, V_T1, V_T2, LDS_GB+2560))
lab("L_gb_done")
e("s_mov_b64 exec, s[50:51]")
e("s_waitcnt vmcnt(15)")
e("s_memtime s[54:55]")
e("v_mov_b32 v%d, 0" % V_SUM)
e("v_mov_b32 v%d, 0" % V_SQ)
e("s_mov_b32 s49, 0x3f803f80")
for i in range(80):
    e("v_dot2_f32_bf16 v%d, v%d, s49, v%d" % (V_SUM, XA+i, V_SUM))
    e("v_dot2_f32_bf16 v%d, v%d, v%d, v%d" % (V_SQ, XA+i, XA+i, V_SQ))
e("v_and_b32 v%d, 31, v%d" % (V_T0, V_LANE))
e("s_lshl_b32 s%d, s%d, 5" % (S_T0, S_RB))
e("v_add_u32 v%d, s%d, v%d" % (V_T0, S_T0, V_T0))
e("v_lshlrev_b32 v%d, 5, v%d" % (V_STA, V_T0))
e("s_lshl_b32 s%d, s%d, 4" % (S_T0, S_KH))
e("v_lshl_add_u32 v%d, v%d, 3, s%d" % (V_T0, V_H, S_T0))
e("v_add_u32 v%d, v%d, v%d" % (V_T0, V_T0, V_STA))
e("ds_write_b64 v%d, v[%d:%d] offset:%d" % (V_T0, V_SUM, V_SQ, LDS_ST))
e("s_waitcnt lgkmcnt(0)")
e("s_barrier")
e("s_memtime s[56:57]")
e("ds_read_b128 v[%d:%d], v%d offset:%d" % (TMP, TMP+3, V_STA, LDS_ST))
e("ds_read_b128 v[%d:%d], v%d offset:%d" % (TMP+4, TMP+7, V_STA, LDS_ST+16))
e("s_waitcnt lgkmcnt(0)")
e("v_add_f32 v%d, v%d, v%d" % (V_SUM, TMP, TMP+2))
e("v_add_f32 v%d, v%d, v%d" % (V_T0, TMP+4, TMP+6))
e("v_add_f32 v%d, v%d, v%d" % (V_SUM, V_SUM, V_T0))
e("v_add_f32 v%d, v%d, v%d" % (V_SQ, TMP+1, TMP+3))
e("v_add_f32 v%d, v%d, v%d" % (V_T0, TMP+5, TMP+7))
e("v_add_f32 v%d, v%d, v%d" % (V_SQ, V_SQ, V_T0))
e("v_mul_f32 v%d, 0x3acccccd, v%d" % (V_SUM, V_SUM))
e("v_mul_f32 v%d, 0x3acccccd, v%d" % (V_SQ, V_SQ))
e("v_fma_f32 v%d, -v%d, v%d, v%d" % (V_SQ, V_SUM, V_SUM, V_SQ))
e("v_max_f32 v%d, 0, v%d" % (V_SQ, V_SQ))
e("v_add_f32 v%d, 0x3727c5ac, v%d" % (V_SQ, V_SQ))
e("v_rsq_f32 v%d, v%d" % (V_RS, V_SQ))
e("s_nop 0")
e("v_mul_f32 v%d, v%d, v%d" % (V_NM, V_SUM, V_RS))
e("v_sub_f32 v%d, 0, v%d" % (V_NM, V_NM))
e("s_mul_i32 s%d, s%d, 1280" % (S_T0, S_KH))
e("v_lshl_add_u32 v%d, v%d, 5, s%d" % (V_GBA, V_H, S_T0))
for s in range(20):
    e("ds_read_b128 v[%d:%d], v%d offset:%d" % (TMP, TMP+3, V_GBA, LDS_GB + 64*s))
    e("ds_read_b128 v[%d:%d], v%d offset:%d" % (TMP+4, TMP+7, V_GBA, LDS_GB + 64*s + 16))
    e("ds_read_b128 v[%d:%d], v%d offset:%d" % (TMP+8, TMP+11, V_GBA, LDS_GB + 2560 + 64*s))
    e("ds_read_b128 v[%d:%d], v%d offset:%d" % (TMP+12, TMP+15, V_GBA, LDS_GB + 2560 + 64*s + 16))
    e("s_waitcnt lgkmcnt(0)")
    for d in range(4):
        R = XA + 4*s + d
        e("v_lshlrev_b32 v%d, 16, v%d" % (V_T0, R))
        e("v_and_b32 v%d, 0xffff0000, v%d" % (V_T1, R))
        e("v_fma_f32 v%d, v%d, v%d, v%d" % (V_T0, V_T0, V_RS, V_NM))
        e("v_fma_f32 v%d, v%d, v%d, v%d" % (V_T1, V_T1, V_RS, V_NM))
        e("v_fma_f32 v%d, v%d, v%d, v%d" % (V_T0, V_T0, TMP+2*d, TMP+8+2*d))
        e("v_fma_f32 v%d, v%d, v%d, v%d" % (V_T1, V_T1, TMP+2*d+1, TMP+8+2*d+1))
        e("v_cvt_pk_bf16_f32 v%d, v%d, v%d" % (R, V_T0, V_T1))
e("s_memtime s[58:59]")
def trreads(slot, ks, buf):
    for t in range(5):
        for q in range(2):
            off = (16*ks + 4*q)*320 + 64*t
            r = BF + buf*20 + 4*t + 2*q
            e("ds_read_b64_tr_b16 v[%d:%d], v%d offset:%d" % (r, r+1, V_LB+slot, off))
for j in range(5):
    slot = j % 3
    e("s_waitcnt vmcnt(%d)" % (10 if j == 0 else (5 if j < 4 else 0)))
    e("s_barrier")
    trreads(slot, 0, 0)
    if j in (1, 2):
        dma(j+2)
    for ks in range(4):
        buf = ks & 1
        if ks < 3:
            trreads(slot, ks+1, buf ^ 1)
            e("s_waitcnt lgkmcnt(10)")
        else:
            e("s_waitcnt lgkmcnt(0)")
        s = 4*j + ks
        for t in range(5):
            a = ACC + 16*t
            c = ("v[%d:%d]" % (a, a+15)) if s > 0 else "0"
            e("v_mfma_f32_32x32x16_bf16 v[%d:%d], v[%d:%d], v[%d:%d], %s" %
              (a, a+15, BF+buf*20+4*t, BF+buf*20+4*t+3, XA+4*s, XA+4*s+3, c))
e("s_memtime s[60:61]")
e("s_nop 15")
e("s_nop 3")
e("s_barrier")
e("v_lshlrev_b32 v%d, 4, v%d" % (V_EP, V_LANE))
e("s_mul_i32 s%d, s%d, 20480" % (S_T0, S_RB))
e("s_add_u32 s%d, s%d, %d" % (S_T0, S_T0, LDS_RING))
e("v_add_u32 v%d, s%d, v%d" % (V_EP, S_T0, V_EP))
e("s_cmp_eq_u32 s%d, 0" % S_KH)
e("s_cbranch_scc1 L_ep_lo")
for i in range(20):
    e("ds_write_b128 v%d, v[%d:%d] offset:%d" % (V_EP, ACC+4*i, ACC+4*i+3, 1024*i))
e("s_waitcnt lgkmcnt(0)")
e("s_barrier")
e("s_branch L_end")
lab("L_ep_lo")
e("s_barrier")
e("s_mul_i32 s%d, s%d, 320" % (S_T0, S_NS))
e("v_add_u32 v%d, s%d, v%d" % (V_OOFF, S_T0, V_OOFF))
e("v_lshl_add_u32 v%d, v%d, 3, v%d" % (V_OOFF, V_H, V_OOFF))
for t in range(5):
    for q in range(4):
        i = 4*t + q
        e("ds_read_b128 v[%d:%d], v%d offset:%d" % (BF+4*q, BF+4*q+3, V_EP, 1024*i))
    e("s_waitcnt lgkmcnt(0)")
    for q in range(4):
        a = ACC + 16*t + 4*q
        for z in range(4):
            e("v_add_f32 v%d, v%d, v%d" % (a+z, a+z, BF+4*q+z))
        e("v_cvt_pk_bf16_f32 v%d, v%d, v%d" % (BF+20+2*q, a, a+1))
        e("v_cvt_pk_bf16_f32 v%d, v%d, v%d" % (BF+20+2*q+1, a+2, a+3))
        e("buffer_store_dwordx2 v[%d:%d], v%d, s[12:15], 0 offen offset:%d" % (BF+20+2*q, BF+20+2*q+1, V_OOFF, 64*t+16*q))
e("s_waitcnt vmcnt(0)")
e("s_memtime s[62:63]")
e("s_memrealtime s[66:67]")
e("s_cmp_lg_u32 s2, 0")
e("s_cbranch_scc1 L_end")
e("s_cmp_lg_u32 s%d, 0" % S_W)
e("s_cbranch_scc1 L_end")
e("s_waitcnt lgkmcnt(0)")
e("s_mov_b32 s44, s42")
e("s_and_b32 s45, s43, 0xffff")
e("s_mov_b32 s46, 256")
e("s_mov_b32 s47, 0x00020000")
e("v_mov_b32 v1, 0")
for i in range(6):
    e("s_sub_u32 s48, s%d, s52" % (52+2*i))
    e("v_mov_b32 v2, s48")
    e("buffer_store_dword v2, v1, s[44:47], 0 offen offset:%d" % (4*i))
e("s_sub_u32 s48, s66, s64")
e("v_mov_b32 v2, s48")
e("buffer_store_dword v2, v1, s[44:47], 0 offen offset:24")
e("s_waitcnt vmcnt(0)")
lab("L_end")
e("s_endpgm")

body = "\n".join(L)
out = HDR + """; Override launch geometry by editing the next line.
; @launch grid=(256,1,1) block=(512,1,1) lds=%d
.amdgcn_target "amdgcn-amd-amdhsa--gfx950"
.text
.globl standalone__layernorm_linear__sampling_kernel
.p2align 8
.type standalone__layernorm_linear__sampling_kernel,@function
standalone__layernorm_linear__sampling_kernel:
%s
.section .rodata,"a"
.p2align 6
.amdhsa_kernel standalone__layernorm_linear__sampling_kernel
  .amdhsa_next_free_vgpr %d
  .amdhsa_next_free_sgpr 72
  .amdhsa_accum_offset %d
  .amdhsa_group_segment_fixed_size 0
  .amdhsa_kernarg_size 56
  .amdhsa_user_sgpr_count 2
  .amdhsa_user_sgpr_kernarg_segment_ptr 1
  .amdhsa_system_sgpr_workgroup_id_x 1
.end_amdhsa_kernel
""" % (LDS_TOTAL, body, NVGPR, NVGPR)
open(sys.argv[1] if len(sys.argv) > 1 else 'standalone__layernorm_linear__sampling.s', 'w').write(out)
```

```python
import sys

L = []
def e(s): L.append("    " + s)
def lab(s): L.append(s + ":")

HDR = open('standalone__layernorm_linear__sampling.s.ref').read().split('; Override')[0]

SLOT = 40960
LDS_GB = 0
LDS_ST = LDS_GB + 5120
LDS_RING = LDS_ST + 4096
LDS_TOTAL = LDS_RING + 3 * SLOT

S_MT, S_NS, S_W, S_KH, S_RB, S_T0, S_T1 = 24, 25, 26, 27, 28, 29, 30

XA = 0
ACC = 80
BF = 160
TMP = 200
V_LANE, V_XOFF, V_H, V_T0, V_T1, V_T2, V_T3 = 216, 217, 218, 219, 220, 221, 222
V_DMA = 223
V_LB = 228
V_SUM, V_SQ, V_RS, V_NM = 232, 233, 234, 231
V_STA, V_GBA, V_OOFF, V_EP = 235, 236, 237, 238
V_G, V_B = 239, 240
V_TID = 241
NVGPR = 244

e("s_cmp_ge_u32 s2, 256")
e("s_cbranch_scc1 L_end")
e("s_memtime s[52:53]")
e("s_memrealtime s[64:65]")
e("s_load_dwordx2 s[42:43], s[0:1], 40")
e("s_load_dwordx4 s[32:35], s[0:1], 0")
e("s_load_dwordx4 s[36:39], s[0:1], 16")
e("s_load_dwordx2 s[40:41], s[0:1], 32")
e("s_and_b32 s%d, s2, 7" % S_T0)
e("s_lshr_b32 s%d, s2, 3" % S_T1)
e("s_and_b32 s%d, s%d, 3" % (S_NS, S_T1))
e("s_lshr_b32 s%d, s%d, 2" % (S_T1, S_T1))
e("s_lshl_b32 s%d, s%d, 3" % (S_MT, S_T0))
e("s_add_u32 s%d, s%d, s%d" % (S_MT, S_MT, S_T1))
e("v_mov_b32 v%d, v0" % V_TID)
e("v_and_b32 v%d, 63, v0" % V_LANE)
e("v_lshrrev_b32 v%d, 6, v0" % V_T0)
e("s_nop 0")
e("v_readfirstlane_b32 s%d, v%d" % (S_W, V_T0))
e("s_nop 3")
e("s_and_b32 s%d, s%d, 3" % (S_RB, S_W))
e("s_lshr_b32 s%d, s%d, 2" % (S_KH, S_W))
e("s_waitcnt lgkmcnt(0)")
def srd(d, lo, hi, n):
    e("s_mov_b32 s%d, s%d" % (d, lo))
    e("s_and_b32 s%d, s%d, 0xffff" % (d+1, hi))
    e("s_mov_b32 s%d, %d" % (d+2, n))
    e("s_mov_b32 s%d, 0x00020000" % (d+3))
srd(4, 32, 33, 10485760)
srd(16, 34, 35, 1280)
srd(20, 36, 37, 1280)
srd(8, 38, 39, 819200)
srd(12, 40, 41, 10485760)
e("v_lshlrev_b32 v%d, 2, v0" % V_T1)
e("buffer_load_dword v%d, v%d, s[16:19], 0 offen" % (V_G, V_T1))
e("buffer_load_dword v%d, v%d, s[20:23], 0 offen" % (V_B, V_T1))
e("v_and_b32 v%d, 31, v%d" % (V_T0, V_LANE))
e("v_lshrrev_b32 v%d, 5, v%d" % (V_H, V_LANE))
e("s_lshl_b32 s%d, s%d, 7" % (S_T0, S_MT))
e("s_lshl_b32 s%d, s%d, 5" % (S_T1, S_RB))
e("s_add_u32 s%d, s%d, s%d" % (S_T0, S_T0, S_T1))
e("v_add_u32 v%d, s%d, v%d" % (V_T0, S_T0, V_T0))
e("s_movk_i32 s%d, 1280" % S_T1)
e("v_mul_lo_u32 v%d, v%d, s%d" % (V_XOFF, V_T0, S_T1))
e("v_mov_b32 v%d, v%d" % (V_OOFF, V_XOFF))
e("s_mul_i32 s%d, s%d, 640" % (S_T1, S_KH))
e("v_add_u32 v%d, s%d, v%d" % (V_XOFF, S_T1, V_XOFF))
e("v_lshl_add_u32 v%d, v%d, 4, v%d" % (V_XOFF, V_H, V_XOFF))
for s in range(20):
    e("buffer_load_dwordx4 v[%d:%d], v%d, s[4:7], 0 offen offset:%d" % (XA+4*s, XA+4*s+3, V_XOFF, 32*s))
e("s_mul_i32 s%d, s%d, 320" % (S_T0, S_W))
e("s_mul_i32 s%d, s%d, 320" % (S_T1, S_NS))
e("s_movk_i32 s44, 3277")
e("s_movk_i32 s45, 1280")
for u in range(5):
    e("v_add_u32 v%d, s%d, v%d" % (V_T0, S_T0, V_LANE))
    if u: e("v_add_u32 v%d, %d, v%d" % (V_T0, 64*u, V_T0))
    e("v_mul_lo_u32 v%d, v%d, s44" % (V_T1, V_T0))
    e("v_lshrrev_b32 v%d, 16, v%d" % (V_T1, V_T1))
    e("v_mul_u32_u24 v%d, 20, v%d" % (V_T2, V_T1))
    e("v_sub_u32 v%d, v%d, v%d" % (V_T2, V_T0, V_T2))
    e("v_lshrrev_b32 v%d, 6, v%d" % (V_T3, V_T1))
    e("v_mul_u32_u24 v%d, 320, v%d" % (V_T3, V_T3))
    e("v_and_b32 v%d, 63, v%d" % (V_T1, V_T1))
    e("v_add_u32 v%d, v%d, v%d" % (V_T1, V_T1, V_T3))
    e("v_mul_lo_u32 v%d, v%d, s45" % (V_T1, V_T1))
    e("v_lshl_add_u32 v%d, v%d, 4, v%d" % (V_T1, V_T2, V_T1))
    e("v_add_u32 v%d, s%d, v%d" % (V_DMA+u, S_T1, V_T1))
e("s_mul_i32 s46, s%d, 5120" % S_W)
def dma(stage):
    slot = stage % 3
    e("s_mov_b32 s47, %d" % (stage*81920))
    for u in range(5):
        e("s_add_u32 s48, s46, %d" % (LDS_RING + slot*SLOT + u*1024))
        e("s_mov_b32 m0, s48")
        e("s_nop 0")
        e("buffer_load_dwordx4 v%d, s[8:11], s47 offen lds" % (V_DMA+u))
e("v_and_b32 v%d, 15, v%d" % (V_T0, V_LANE))
e("v_lshrrev_b32 v%d, 2, v%d" % (V_T1, V_T0))
e("v_lshl_add_u32 v%d, v%d, 3, v%d" % (V_T1, V_H, V_T1))
e("v_mul_u32_u24 v%d, 320, v%d" % (V_T1, V_T1))
e("v_and_b32 v%d, 3, v%d" % (V_T0, V_T0))
e("v_lshl_add_u32 v%d, v%d, 3, v%d" % (V_T1, V_T0, V_T1))
e("v_bfe_u32 v%d, v%d, 4, 1" % (V_T0, V_LANE))
e("v_lshl_add_u32 v%d, v%d, 5, v%d" % (V_T1, V_T0, V_T1))
e("s_mul_i32 s%d, s%d, 20480" % (S_T0, S_KH))
e("s_add_u32 s%d, s%d, %d" % (S_T0, S_T0, LDS_RING))
e("v_add_u32 v%d, s%d, v%d" % (V_LB, S_T0, V_T1))
e("v_add_u32 v%d, %d, v%d" % (V_LB+1, SLOT, V_LB))
e("v_add_u32 v%d, %d, v%d" % (V_LB+2, 2*SLOT, V_LB))
e("s_waitcnt vmcnt(20)")
e("v_cmp_gt_u32 vcc, 320, v%d" % V_TID)
e("s_and_saveexec_b64 s[50:51], vcc")
e("s_cbranch_execz L_gb_done")
e("v_lshlrev_b32 v%d, 3, v%d" % (V_T0, V_TID))
e("v_lshlrev_b32 v%d, 16, v%d" % (V_T1, V_G))
e("v_and_b32 v%d, 0xffff0000, v%d" % (V_T2, V_G))
e("ds_write_b64 v%d, v[%d:%d] offset:%d" % (V_T0, V_T1, V_T2, LDS_GB))
e("v_lshlrev_b32 v%d, 16, v%d" % (V_T1, V_B))
e("v_and_b32 v%d, 0xffff0000, v%d" % (V_T2, V_B))
e("ds_write_b64 v%d, v[%d:%d] offset:%d" % (V_T0, V_T1, V_T2, LDS_GB+2560))
lab("L_gb_done")
e("s_mov_b64 exec, s[50:51]")
e("s_waitcnt vmcnt(0)")
e("s_memtime s[54:55]")
dma(0); dma(1); dma(2)
e("v_mov_b32 v%d, 0" % V_SUM)
e("v_mov_b32 v%d, 0" % V_SQ)
e("s_mov_b32 s49, 0x3f803f80")
for i in range(80):
    e("v_dot2_f32_bf16 v%d, v%d, s49, v%d" % (V_SUM, XA+i, V_SUM))
    e("v_dot2_f32_bf16 v%d, v%d, v%d, v%d" % (V_SQ, XA+i, XA+i, V_SQ))
e("v_and_b32 v%d, 31, v%d" % (V_T0, V_LANE))
e("s_lshl_b32 s%d, s%d, 5" % (S_T0, S_RB))
e("v_add_u32 v%d, s%d, v%d" % (V_T0, S_T0, V_T0))
e("v_lshlrev_b32 v%d, 5, v%d" % (V_STA, V_T0))
e("s_lshl_b32 s%d, s%d, 4" % (S_T0, S_KH))
e("v_lshl_add_u32 v%d, v%d, 3, s%d" % (V_T0, V_H, S_T0))
e("v_add_u32 v%d, v%d, v%d" % (V_T0, V_T0, V_STA))
e("ds_write_b64 v%d, v[%d:%d] offset:%d" % (V_T0, V_SUM, V_SQ, LDS_ST))
e("s_waitcnt lgkmcnt(0)")
e("s_barrier")
e("s_memtime s[56:57]")
e("ds_read_b128 v[%d:%d], v%d offset:%d" % (TMP, TMP+3, V_STA, LDS_ST))
e("ds_read_b128 v[%d:%d], v%d offset:%d" % (TMP+4, TMP+7, V_STA, LDS_ST+16))
e("s_waitcnt lgkmcnt(0)")
e("v_add_f32 v%d, v%d, v%d" % (V_SUM, TMP, TMP+2))
e("v_add_f32 v%d, v%d, v%d" % (V_T0, TMP+4, TMP+6))
e("v_add_f32 v%d, v%d, v%d" % (V_SUM, V_SUM, V_T0))
e("v_add_f32 v%d, v%d, v%d" % (V_SQ, TMP+1, TMP+3))
e("v_add_f32 v%d, v%d, v%d" % (V_T0, TMP+5, TMP+7))
e("v_add_f32 v%d, v%d, v%d" % (V_SQ, V_SQ, V_T0))
e("v_mul_f32 v%d, 0x3acccccd, v%d" % (V_SUM, V_SUM))
e("v_mul_f32 v%d, 0x3acccccd, v%d" % (V_SQ, V_SQ))
e("v_fma_f32 v%d, -v%d, v%d, v%d" % (V_SQ, V_SUM, V_SUM, V_SQ))
e("v_max_f32 v%d, 0, v%d" % (V_SQ, V_SQ))
e("v_add_f32 v%d, 0x3727c5ac, v%d" % (V_SQ, V_SQ))
e("v_rsq_f32 v%d, v%d" % (V_RS, V_SQ))
e("s_nop 0")
e("v_mul_f32 v%d, v%d, v%d" % (V_NM, V_SUM, V_RS))
e("v_sub_f32 v%d, 0, v%d" % (V_NM, V_NM))
e("s_mul_i32 s%d, s%d, 1280" % (S_T0, S_KH))
e("v_lshl_add_u32 v%d, v%d, 5, s%d" % (V_GBA, V_H, S_T0))
for s in range(20):
    e("ds_read_b128 v[%d:%d], v%d offset:%d" % (TMP, TMP+3, V_GBA, LDS_GB + 64*s))
    e("ds_read_b128 v[%d:%d], v%d offset:%d" % (TMP+4, TMP+7, V_GBA, LDS_GB + 64*s + 16))
    e("ds_read_b128 v[%d:%d], v%d offset:%d" % (TMP+8, TMP+11, V_GBA, LDS_GB + 2560 + 64*s))
    e("ds_read_b128 v[%d:%d], v%d offset:%d" % (TMP+12, TMP+15, V_GBA, LDS_GB + 2560 + 64*s + 16))
    e("s_waitcnt lgkmcnt(0)")
    for d in range(4):
        R = XA + 4*s + d
        e("v_lshlrev_b32 v%d, 16, v%d" % (V_T0, R))
        e("v_and_b32 v%d, 0xffff0000, v%d" % (V_T1, R))
        e("v_fma_f32 v%d, v%d, v%d, v%d" % (V_T0, V_T0, V_RS, V_NM))
        e("v_fma_f32 v%d, v%d, v%d, v%d" % (V_T1, V_T1, V_RS, V_NM))
        e("v_fma_f32 v%d, v%d, v%d, v%d" % (V_T0, V_T0, TMP+2*d, TMP+8+2*d))
        e("v_fma_f32 v%d, v%d, v%d, v%d" % (V_T1, V_T1, TMP+2*d+1, TMP+8+2*d+1))
        e("v_cvt_pk_bf16_f32 v%d, v%d, v%d" % (R, V_T0, V_T1))
e("s_memtime s[58:59]")
def trreads(slot, ks, buf):
    for t in range(5):
        for q in range(2):
            off = (16*ks + 4*q)*320 + 64*t
            r = BF + buf*20 + 4*t + 2*q
            e("ds_read_b64_tr_b16 v[%d:%d], v%d offset:%d" % (r, r+1, V_LB+slot, off))
for j in range(5):
    slot = j % 3
    e("s_waitcnt vmcnt(%d)" % (10 if j == 0 else (5 if j < 4 else 0)))
    e("s_barrier")
    trreads(slot, 0, 0)
    if j in (1, 2):
        dma(j+2)
    for ks in range(4):
        buf = ks & 1
        if ks < 3:
            trreads(slot, ks+1, buf ^ 1)
            e("s_waitcnt lgkmcnt(10)")
        else:
            e("s_waitcnt lgkmcnt(0)")
        s = 4*j + ks
        for t in range(5):
            a = ACC + 16*t
            c = ("v[%d:%d]" % (a, a+15)) if s > 0 else "0"
            e("v_mfma_f32_32x32x16_bf16 v[%d:%d], v[%d:%d], v[%d:%d], %s" %
              (a, a+15, BF+buf*20+4*t, BF+buf*20+4*t+3, XA+4*s, XA+4*s+3, c))
e("s_memtime s[60:61]")
e("s_nop 15")
e("s_nop 3")
e("s_barrier")
e("v_lshlrev_b32 v%d, 4, v%d" % (V_EP, V_LANE))
e("s_mul_i32 s%d, s%d, 20480" % (S_T0, S_RB))
e("s_add_u32 s%d, s%d, %d" % (S_T0, S_T0, LDS_RING))
e("v_add_u32 v%d, s%d, v%d" % (V_EP, S_T0, V_EP))
e("s_cmp_eq_u32 s%d, 0" % S_KH)
e("s_cbranch_scc1 L_ep_lo")
for i in range(20):
    e("ds_write_b128 v%d, v[%d:%d] offset:%d" % (V_EP, ACC+4*i, ACC+4*i+3, 1024*i))
e("s_waitcnt lgkmcnt(0)")
e("s_barrier")
e("s_branch L_end")
lab("L_ep_lo")
e("s_barrier")
e("s_mul_i32 s%d, s%d, 320" % (S_T0, S_NS))
e("v_add_u32 v%d, s%d, v%d" % (V_OOFF, S_T0, V_OOFF))
e("v_lshl_add_u32 v%d, v%d, 3, v%d" % (V_OOFF, V_H, V_OOFF))
for t in range(5):
    for q in range(4):
        i = 4*t + q
        e("ds_read_b128 v[%d:%d], v%d offset:%d" % (BF+4*q, BF+4*q+3, V_EP, 1024*i))
    e("s_waitcnt lgkmcnt(0)")
    for q in range(4):
        a = ACC + 16*t + 4*q
        for z in range(4):
            e("v_add_f32 v%d, v%d, v%d" % (a+z, a+z, BF+4*q+z))
        e("v_cvt_pk_bf16_f32 v%d, v%d, v%d" % (BF+20+2*q, a, a+1))
        e("v_cvt_pk_bf16_f32 v%d, v%d, v%d" % (BF+20+2*q+1, a+2, a+3))
        e("buffer_store_dwordx2 v[%d:%d], v%d, s[12:15], 0 offen offset:%d" % (BF+20+2*q, BF+20+2*q+1, V_OOFF, 64*t+16*q))
e("s_waitcnt vmcnt(0)")
e("s_memtime s[62:63]")
e("s_memrealtime s[66:67]")
e("s_cmp_lg_u32 s2, 0")
e("s_cbranch_scc1 L_end")
e("s_cmp_lg_u32 s%d, 0" % S_W)
e("s_cbranch_scc1 L_end")
e("s_waitcnt lgkmcnt(0)")
e("s_mov_b32 s44, s42")
e("s_and_b32 s45, s43, 0xffff")
e("s_mov_b32 s46, 256")
e("s_mov_b32 s47, 0x00020000")
e("v_mov_b32 v1, 0")
for i in range(6):
    e("s_sub_u32 s48, s%d, s52" % (52+2*i))
    e("v_mov_b32 v2, s48")
    e("buffer_store_dword v2, v1, s[44:47], 0 offen offset:%d" % (4*i))
e("s_sub_u32 s48, s66, s64")
e("v_mov_b32 v2, s48")
e("buffer_store_dword v2, v1, s[44:47], 0 offen offset:24")
e("s_waitcnt vmcnt(0)")
lab("L_end")
e("s_endpgm")

body = "\n".join(L)
out = HDR + """; Override launch geometry by editing the next line.
; @launch grid=(256,1,1) block=(512,1,1) lds=%d
.amdgcn_target "amdgcn-amd-amdhsa--gfx950"
.text
.globl standalone__layernorm_linear__sampling_kernel
.p2align 8
.type standalone__layernorm_linear__sampling_kernel,@function
standalone__layernorm_linear__sampling_kernel:
%s
.section .rodata,"a"
.p2align 6
.amdhsa_kernel standalone__layernorm_linear__sampling_kernel
  .amdhsa_next_free_vgpr %d
  .amdhsa_next_free_sgpr 72
  .amdhsa_accum_offset %d
  .amdhsa_group_segment_fixed_size 0
  .amdhsa_kernarg_size 56
  .amdhsa_user_sgpr_count 2
  .amdhsa_user_sgpr_kernarg_segment_ptr 1
  .amdhsa_system_sgpr_workgroup_id_x 1
.end_amdhsa_kernel
""" % (LDS_TOTAL, body, NVGPR, NVGPR)
open(sys.argv[1] if len(sys.argv) > 1 else 'standalone__layernorm_linear__sampling.s', 'w').write(out)
```

```python
import sys

L = []
def e(s): L.append("    " + s)
def lab(s): L.append(s + ":")

HDR = open('standalone__layernorm_linear__sampling.s.ref').read().split('; Override')[0]

SLOT = 40960
LDS_GB = 0
LDS_ST = LDS_GB + 5120
LDS_RING = LDS_ST + 4096
LDS_TOTAL = 163840

S_MT, S_NS, S_W, S_KH, S_RB, S_T0, S_T1 = 24, 25, 26, 27, 28, 29, 30

XA = 0
ACC = 80
BF = 160
TMP = 200
V_LANE, V_XOFF, V_H, V_T0, V_T1, V_T2, V_T3 = 216, 217, 218, 219, 220, 221, 222
V_DMA = 223
V_LB = 228
V_SUM, V_SQ, V_RS, V_NM = 232, 233, 234, 231
V_STA, V_GBA, V_OOFF, V_EP = 235, 236, 237, 238
V_G, V_B = 239, 240
V_TID = 241
NVGPR = 244

e("s_cmp_ge_u32 s2, 256")
e("s_cbranch_scc1 L_end")
e("s_load_dwordx4 s[32:35], s[0:1], 0")
e("s_load_dwordx4 s[36:39], s[0:1], 16")
e("s_load_dwordx2 s[40:41], s[0:1], 32")
e("s_and_b32 s%d, s2, 7" % S_T0)
e("s_lshr_b32 s%d, s2, 3" % S_T1)
e("s_and_b32 s%d, s%d, 3" % (S_NS, S_T1))
e("s_lshr_b32 s%d, s%d, 2" % (S_T1, S_T1))
e("s_lshl_b32 s%d, s%d, 3" % (S_MT, S_T0))
e("s_add_u32 s%d, s%d, s%d" % (S_MT, S_MT, S_T1))
e("v_mov_b32 v%d, v0" % V_TID)
e("v_and_b32 v%d, 63, v0" % V_LANE)
e("v_lshrrev_b32 v%d, 6, v0" % V_T0)
e("s_nop 0")
e("v_readfirstlane_b32 s%d, v%d" % (S_W, V_T0))
e("s_nop 3")
e("s_and_b32 s%d, s%d, 3" % (S_RB, S_W))
e("s_lshr_b32 s%d, s%d, 2" % (S_KH, S_W))
e("s_waitcnt lgkmcnt(0)")
def srd(d, lo, hi, n):
    e("s_mov_b32 s%d, s%d" % (d, lo))
    e("s_and_b32 s%d, s%d, 0xffff" % (d+1, hi))
    e("s_mov_b32 s%d, %d" % (d+2, n))
    e("s_mov_b32 s%d, 0x00020000" % (d+3))
srd(4, 32, 33, 10485760)
srd(16, 34, 35, 1280)
srd(20, 36, 37, 1280)
srd(8, 38, 39, 819200)
srd(12, 40, 41, 10485760)
e("v_lshlrev_b32 v%d, 2, v0" % V_T1)
e("buffer_load_dword v%d, v%d, s[16:19], 0 offen" % (V_G, V_T1))
e("buffer_load_dword v%d, v%d, s[20:23], 0 offen" % (V_B, V_T1))
e("v_and_b32 v%d, 31, v%d" % (V_T0, V_LANE))
e("v_lshrrev_b32 v%d, 5, v%d" % (V_H, V_LANE))
e("s_lshl_b32 s%d, s%d, 7" % (S_T0, S_MT))
e("s_lshl_b32 s%d, s%d, 5" % (S_T1, S_RB))
e("s_add_u32 s%d, s%d, s%d" % (S_T0, S_T0, S_T1))
e("v_add_u32 v%d, s%d, v%d" % (V_T0, S_T0, V_T0))
e("s_movk_i32 s%d, 1280" % S_T1)
e("v_mul_lo_u32 v%d, v%d, s%d" % (V_XOFF, V_T0, S_T1))
e("v_mov_b32 v%d, v%d" % (V_OOFF, V_XOFF))
e("s_mul_i32 s%d, s%d, 640" % (S_T1, S_KH))
e("v_add_u32 v%d, s%d, v%d" % (V_XOFF, S_T1, V_XOFF))
e("v_lshl_add_u32 v%d, v%d, 4, v%d" % (V_XOFF, V_H, V_XOFF))
e("s_lshl_b32 s%d, s%d, 7" % (S_T0, S_MT))
e("s_lshl_b32 s%d, s%d, 4" % (S_T1, S_W))
e("s_add_u32 s%d, s%d, s%d" % (S_T0, S_T0, S_T1))
e("s_mul_i32 s47, s%d, 1280" % S_T0)
e("s_mov_b32 s44, 52429")
e("s_mul_i32 s46, s%d, 20480" % S_W)
for u in range(20):
    e("v_add_u32 v%d, %d, v%d" % (V_T0, 64*u, V_LANE))
    e("v_mul_lo_u32 v%d, v%d, s44" % (V_T1, V_T0))
    e("v_lshrrev_b32 v%d, 22, v%d" % (V_T1, V_T1))
    e("v_mul_u32_u24 v%d, 80, v%d" % (V_T2, V_T1))
    e("v_sub_u32 v%d, v%d, v%d" % (V_T2, V_T0, V_T2))
    e("v_xor_b32 v%d, v%d, v%d" % (V_T2, V_T2, V_T1))
    e("v_mul_u32_u24 v%d, 1280, v%d" % (V_T1, V_T1))
    e("v_lshl_add_u32 v%d, v%d, 4, v%d" % (V_T1, V_T2, V_T1))
    e("s_add_u32 s48, s46, %d" % (u*1024))
    e("s_mov_b32 m0, s48")
    e("s_nop 0")
    e("buffer_load_dwordx4 v%d, s[4:7], s47 offen lds" % V_T1)

e("s_mul_i32 s%d, s%d, 320" % (S_T0, S_W))
e("s_mul_i32 s%d, s%d, 320" % (S_T1, S_NS))
e("s_movk_i32 s44, 3277")
e("s_movk_i32 s45, 1280")
for u in range(5):
    e("v_add_u32 v%d, s%d, v%d" % (V_T0, S_T0, V_LANE))
    if u: e("v_add_u32 v%d, %d, v%d" % (V_T0, 64*u, V_T0))
    e("v_mul_lo_u32 v%d, v%d, s44" % (V_T1, V_T0))
    e("v_lshrrev_b32 v%d, 16, v%d" % (V_T1, V_T1))
    e("v_mul_u32_u24 v%d, 20, v%d" % (V_T2, V_T1))
    e("v_sub_u32 v%d, v%d, v%d" % (V_T2, V_T0, V_T2))
    e("v_lshrrev_b32 v%d, 6, v%d" % (V_T3, V_T1))
    e("v_mul_u32_u24 v%d, 320, v%d" % (V_T3, V_T3))
    e("v_and_b32 v%d, 63, v%d" % (V_T1, V_T1))
    e("v_add_u32 v%d, v%d, v%d" % (V_T1, V_T1, V_T3))
    e("v_mul_lo_u32 v%d, v%d, s45" % (V_T1, V_T1))
    e("v_lshl_add_u32 v%d, v%d, 4, v%d" % (V_T1, V_T2, V_T1))
    e("v_add_u32 v%d, s%d, v%d" % (V_DMA+u, S_T1, V_T1))
e("s_mul_i32 s46, s%d, 5120" % S_W)
def dma(stage):
    slot = stage % 3
    e("s_mov_b32 s47, %d" % (stage*81920))
    for u in range(5):
        e("s_add_u32 s48, s46, %d" % (LDS_RING + slot*SLOT + u*1024))
        e("s_mov_b32 m0, s48")
        e("s_nop 0")
        e("buffer_load_dwordx4 v%d, s[8:11], s47 offen lds" % (V_DMA+u))
e("v_and_b32 v%d, 15, v%d" % (V_T0, V_LANE))
e("v_lshrrev_b32 v%d, 2, v%d" % (V_T1, V_T0))
e("v_lshl_add_u32 v%d, v%d, 3, v%d" % (V_T1, V_H, V_T1))
e("v_mul_u32_u24 v%d, 320, v%d" % (V_T1, V_T1))
e("v_and_b32 v%d, 3, v%d" % (V_T0, V_T0))
e("v_lshl_add_u32 v%d, v%d, 3, v%d" % (V_T1, V_T0, V_T1))
e("v_bfe_u32 v%d, v%d, 4, 1" % (V_T0, V_LANE))
e("v_lshl_add_u32 v%d, v%d, 5, v%d" % (V_T1, V_T0, V_T1))
e("s_mul_i32 s%d, s%d, 20480" % (S_T0, S_KH))
e("s_add_u32 s%d, s%d, %d" % (S_T0, S_T0, LDS_RING))
e("v_add_u32 v%d, s%d, v%d" % (V_LB, S_T0, V_T1))
e("v_add_u32 v%d, %d, v%d" % (V_LB+1, SLOT, V_LB))
e("v_add_u32 v%d, %d, v%d" % (V_LB+2, 2*SLOT, V_LB))
e("s_waitcnt vmcnt(0)")
e("s_barrier")
e("v_and_b32 v%d, 31, v%d" % (V_T0, V_LANE))
e("s_lshl_b32 s%d, s%d, 5" % (S_T0, S_RB))
e("v_add_u32 v%d, s%d, v%d" % (V_T0, S_T0, V_T0))
e("v_mul_u32_u24 v%d, 1280, v%d" % (V_T1, V_T0))
e("v_and_b32 v%d, 15, v%d" % (V_T0, V_T0))
e("s_mul_i32 s%d, s%d, 40" % (S_T0, S_KH))
e("v_add_u32 v%d, s%d, v%d" % (V_T2, S_T0, V_H))
for sidx in range(20):
    e("v_add_u32 v%d, %d, v%d" % (V_T3, 2*sidx, V_T2))
    e("v_xor_b32 v%d, v%d, v%d" % (V_T3, V_T3, V_T0))
    e("v_lshl_add_u32 v%d, v%d, 4, v%d" % (V_T3, V_T3, V_T1))
    e("ds_read_b128 v[%d:%d], v%d" % (XA+4*sidx, XA+4*sidx+3, V_T3))
e("s_waitcnt lgkmcnt(0)")
e("s_barrier")
e("s_mul_i32 s46, s%d, 5120" % S_W)
dma(0); dma(1); dma(2)
e("v_cmp_gt_u32 vcc, 320, v%d" % V_TID)
e("s_and_saveexec_b64 s[50:51], vcc")
e("s_cbranch_execz L_gb_done")
e("v_lshlrev_b32 v%d, 3, v%d" % (V_T0, V_TID))
e("v_lshlrev_b32 v%d, 16, v%d" % (V_T1, V_G))
e("v_and_b32 v%d, 0xffff0000, v%d" % (V_T2, V_G))
e("ds_write_b64 v%d, v[%d:%d] offset:%d" % (V_T0, V_T1, V_T2, LDS_GB))
e("v_lshlrev_b32 v%d, 16, v%d" % (V_T1, V_B))
e("v_and_b32 v%d, 0xffff0000, v%d" % (V_T2, V_B))
e("ds_write_b64 v%d, v[%d:%d] offset:%d" % (V_T0, V_T1, V_T2, LDS_GB+2560))
lab("L_gb_done")
e("s_mov_b64 exec, s[50:51]")
e("v_mov_b32 v%d, 0" % V_SUM)
e("v_mov_b32 v%d, 0" % V_SQ)
e("s_mov_b32 s49, 0x3f803f80")
for i in range(80):
    e("v_dot2_f32_bf16 v%d, v%d, s49, v%d" % (V_SUM, XA+i, V_SUM))
    e("v_dot2_f32_bf16 v%d, v%d, v%d, v%d" % (V_SQ, XA+i, XA+i, V_SQ))
e("v_and_b32 v%d, 31, v%d" % (V_T0, V_LANE))
e("s_lshl_b32 s%d, s%d, 5" % (S_T0, S_RB))
e("v_add_u32 v%d, s%d, v%d" % (V_T0, S_T0, V_T0))
e("v_lshlrev_b32 v%d, 5, v%d" % (V_STA, V_T0))
e("s_lshl_b32 s%d, s%d, 4" % (S_T0, S_KH))
e("v_lshl_add_u32 v%d, v%d, 3, s%d" % (V_T0, V_H, S_T0))
e("v_add_u32 v%d, v%d, v%d" % (V_T0, V_T0, V_STA))
e("ds_write_b64 v%d, v[%d:%d] offset:%d" % (V_T0, V_SUM, V_SQ, LDS_ST))
e("s_waitcnt lgkmcnt(0)")
e("s_barrier")
e("ds_read_b128 v[%d:%d], v%d offset:%d" % (TMP, TMP+3, V_STA, LDS_ST))
e("ds_read_b128 v[%d:%d], v%d offset:%d" % (TMP+4, TMP+7, V_STA, LDS_ST+16))
e("s_waitcnt lgkmcnt(0)")
e("v_add_f32 v%d, v%d, v%d" % (V_SUM, TMP, TMP+2))
e("v_add_f32 v%d, v%d, v%d" % (V_T0, TMP+4, TMP+6))
e("v_add_f32 v%d, v%d, v%d" % (V_SUM, V_SUM, V_T0))
e("v_add_f32 v%d, v%d, v%d" % (V_SQ, TMP+1, TMP+3))
e("v_add_f32 v%d, v%d, v%d" % (V_T0, TMP+5, TMP+7))
e("v_add_f32 v%d, v%d, v%d" % (V_SQ, V_SQ, V_T0))
e("v_mul_f32 v%d, 0x3acccccd, v%d" % (V_SUM, V_SUM))
e("v_mul_f32 v%d, 0x3acccccd, v%d" % (V_SQ, V_SQ))
e("v_fma_f32 v%d, -v%d, v%d, v%d" % (V_SQ, V_SUM, V_SUM, V_SQ))
e("v_max_f32 v%d, 0, v%d" % (V_SQ, V_SQ))
e("v_add_f32 v%d, 0x3727c5ac, v%d" % (V_SQ, V_SQ))
e("v_rsq_f32 v%d, v%d" % (V_RS, V_SQ))
e("s_nop 0")
e("v_mul_f32 v%d, v%d, v%d" % (V_NM, V_SUM, V_RS))
e("v_sub_f32 v%d, 0, v%d" % (V_NM, V_NM))
e("s_mul_i32 s%d, s%d, 1280" % (S_T0, S_KH))
e("v_lshl_add_u32 v%d, v%d, 5, s%d" % (V_GBA, V_H, S_T0))
for s in range(20):
    e("ds_read_b128 v[%d:%d], v%d offset:%d" % (TMP, TMP+3, V_GBA, LDS_GB + 64*s))
    e("ds_read_b128 v[%d:%d], v%d offset:%d" % (TMP+4, TMP+7, V_GBA, LDS_GB + 64*s + 16))
    e("ds_read_b128 v[%d:%d], v%d offset:%d" % (TMP+8, TMP+11, V_GBA, LDS_GB + 2560 + 64*s))
    e("ds_read_b128 v[%d:%d], v%d offset:%d" % (TMP+12, TMP+15, V_GBA, LDS_GB + 2560 + 64*s + 16))
    e("s_waitcnt lgkmcnt(0)")
    for d in range(4):
        R = XA + 4*s + d
        e("v_lshlrev_b32 v%d, 16, v%d" % (V_T0, R))
        e("v_and_b32 v%d, 0xffff0000, v%d" % (V_T1, R))
        e("v_fma_f32 v%d, v%d, v%d, v%d" % (V_T0, V_T0, V_RS, V_NM))
        e("v_fma_f32 v%d, v%d, v%d, v%d" % (V_T1, V_T1, V_RS, V_NM))
        e("v_fma_f32 v%d, v%d, v%d, v%d" % (V_T0, V_T0, TMP+2*d, TMP+8+2*d))
        e("v_fma_f32 v%d, v%d, v%d, v%d" % (V_T1, V_T1, TMP+2*d+1, TMP+8+2*d+1))
        e("v_cvt_pk_bf16_f32 v%d, v%d, v%d" % (R, V_T0, V_T1))
def trreads(slot, ks, buf):
    for t in range(5):
        for q in range(2):
            off = (16*ks + 4*q)*320 + 64*t
            r = BF + buf*20 + 4*t + 2*q
            e("ds_read_b64_tr_b16 v[%d:%d], v%d offset:%d" % (r, r+1, V_LB+slot, off))
for j in range(5):
    slot = j % 3
    e("s_waitcnt vmcnt(%d)" % (10 if j == 0 else (5 if j < 4 else 0)))
    e("s_barrier")
    trreads(slot, 0, 0)
    if j in (1, 2):
        dma(j+2)
    for ks in range(4):
        buf = ks & 1
        if ks < 3:
            trreads(slot, ks+1, buf ^ 1)
            e("s_waitcnt lgkmcnt(10)")
        else:
            e("s_waitcnt lgkmcnt(0)")
        s = 4*j + ks
        for t in range(5):
            a = ACC + 16*t
            c = ("v[%d:%d]" % (a, a+15)) if s > 0 else "0"
            e("v_mfma_f32_32x32x16_bf16 v[%d:%d], v[%d:%d], v[%d:%d], %s" %
              (a, a+15, BF+buf*20+4*t, BF+buf*20+4*t+3, XA+4*s, XA+4*s+3, c))
e("s_nop 15")
e("s_nop 3")
e("s_barrier")
e("v_lshlrev_b32 v%d, 4, v%d" % (V_EP, V_LANE))
e("s_mul_i32 s%d, s%d, 20480" % (S_T0, S_RB))
e("s_add_u32 s%d, s%d, %d" % (S_T0, S_T0, LDS_RING))
e("v_add_u32 v%d, s%d, v%d" % (V_EP, S_T0, V_EP))
e("s_cmp_eq_u32 s%d, 0" % S_KH)
e("s_cbranch_scc1 L_ep_lo")
for i in range(20):
    e("ds_write_b128 v%d, v[%d:%d] offset:%d" % (V_EP, ACC+4*i, ACC+4*i+3, 1024*i))
e("s_waitcnt lgkmcnt(0)")
e("s_barrier")
e("s_branch L_end")
lab("L_ep_lo")
e("s_barrier")
e("v_and_b32 v%d, 31, v%d" % (V_T0, V_LANE))
e("v_mul_u32_u24 v%d, 336, v%d" % (V_T0, V_T0))
e("v_lshl_add_u32 v%d, v%d, 3, v%d" % (V_T0, V_H, V_T0))
e("s_mul_i32 s%d, s%d, 10752" % (S_T0, S_RB))
e("s_add_u32 s%d, s%d, %d" % (S_T0, S_T0, LDS_RING + 81920))
e("v_add_u32 v%d, s%d, v%d" % (V_T0, S_T0, V_T0))
for t in range(5):
    for q in range(4):
        i = 4*t + q
        e("ds_read_b128 v[%d:%d], v%d offset:%d" % (BF+4*q, BF+4*q+3, V_EP, 1024*i))
    e("s_waitcnt lgkmcnt(0)")
    for q in range(4):
        a = ACC + 16*t + 4*q
        for z in range(4):
            e("v_add_f32 v%d, v%d, v%d" % (a+z, a+z, BF+4*q+z))
        e("v_cvt_pk_bf16_f32 v%d, v%d, v%d" % (BF+20+2*q, a, a+1))
        e("v_cvt_pk_bf16_f32 v%d, v%d, v%d" % (BF+20+2*q+1, a+2, a+3))
        e("ds_write_b64 v%d, v[%d:%d] offset:%d" % (V_T0, BF+20+2*q, BF+20+2*q+1, 64*t+16*q))
e("s_waitcnt lgkmcnt(0)")
e("s_movk_i32 s44, 3277")
e("s_lshl_b32 s%d, s%d, 7" % (S_T1, S_MT))
e("s_lshl_b32 s45, s%d, 5" % S_RB)
e("s_add_u32 s%d, s%d, s45" % (S_T1, S_T1))
e("s_mul_i32 s%d, s%d, 1280" % (S_T1, S_T1))
e("s_mul_i32 s45, s%d, 320" % S_NS)
e("s_add_u32 s%d, s%d, s45" % (S_T1, S_T1))
for u in range(10):
    e("v_add_u32 v%d, %d, v%d" % (V_T1, 64*u, V_LANE))
    e("v_mul_lo_u32 v%d, v%d, s44" % (V_T2, V_T1))
    e("v_lshrrev_b32 v%d, 16, v%d" % (V_T2, V_T2))
    e("v_mul_u32_u24 v%d, 20, v%d" % (V_T3, V_T2))
    e("v_sub_u32 v%d, v%d, v%d" % (V_T1, V_T1, V_T3))
    e("v_mul_u32_u24 v%d, 336, v%d" % (V_T3, V_T2))
    e("v_lshl_add_u32 v%d, v%d, 4, v%d" % (V_T3, V_T1, V_T3))
    e("v_add_u32 v%d, s%d, v%d" % (V_T3, S_T0, V_T3))
    e("ds_read_b128 v[%d:%d], v%d" % (XA+4*u, XA+4*u+3, V_T3))
    e("v_mul_u32_u24 v%d, 1280, v%d" % (V_T3, V_T2))
    e("v_lshl_add_u32 v%d, v%d, 4, v%d" % (XA+40+u, V_T1, V_T3))
e("s_waitcnt lgkmcnt(0)")
for u in range(10):
    e("buffer_store_dwordx4 v[%d:%d], v%d, s[12:15], s%d offen" % (XA+4*u, XA+4*u+3, XA+40+u, S_T1))
lab("L_end")
e("s_endpgm")

body = "\n".join(L)
out = HDR + """; Override launch geometry by editing the next line.
; @launch grid=(256,1,1) block=(512,1,1) lds=%d
.amdgcn_target "amdgcn-amd-amdhsa--gfx950"
.text
.globl standalone__layernorm_linear__sampling_kernel
.p2align 8
.type standalone__layernorm_linear__sampling_kernel,@function
standalone__layernorm_linear__sampling_kernel:
%s
.section .rodata,"a"
.p2align 6
.amdhsa_kernel standalone__layernorm_linear__sampling_kernel
  .amdhsa_next_free_vgpr %d
  .amdhsa_next_free_sgpr 64
  .amdhsa_accum_offset %d
  .amdhsa_group_segment_fixed_size 0
  .amdhsa_kernarg_size 56
  .amdhsa_user_sgpr_count 2
  .amdhsa_user_sgpr_kernarg_segment_ptr 1
  .amdhsa_system_sgpr_workgroup_id_x 1
.end_amdhsa_kernel
""" % (LDS_TOTAL, body, NVGPR, NVGPR)
open(sys.argv[1] if len(sys.argv) > 1 else 'standalone__layernorm_linear__sampling.s', 'w').write(out)
```

```python
import sys
L = []
def e(s): L.append("    " + s)
def lab(s): L.append(s + ":")
HDR = open('standalone__layernorm_linear__sampling.s.ref').read().split('; Override')[0]

SLOT = 40960
LDS_GB = 0
LDS_ST = 5120
LDS_RING = 9216
LDS_TOTAL = 163840

S_MT, S_NS, S_W, S_KH, S_RB, S_T0, S_T1 = 24, 25, 26, 27, 28, 29, 30
XA, ACC, BF, TMP = 0, 80, 160, 200
V_LANE, V_H, V_T0, V_T1, V_T2, V_T3 = 232, 233, 234, 235, 236, 237
V_DMA, V_LB = 238, 243
V_RS, V_NM, V_GBA, V_TID, V_EP, V_STA, V_SUM, V_SQ, V_G, V_B = 246, 247, 248, 249, 250, 251, 252, 253, 254, 255
NVGPR = 256

Q = []
def lds(tag, s):
    e(s); Q.append(tag)
def wait_tag(*tags):
    last = -1
    for i, t in enumerate(Q):
        if t in tags: last = i
    n = len(Q) - 1 - last
    n = min(n, 15)
    e("s_waitcnt lgkmcnt(%d)" % n)
    del Q[:last+1]
def wait_all():
    e("s_waitcnt lgkmcnt(0)"); Q.clear()

e("s_cmp_ge_u32 s2, 256")
e("s_cbranch_scc1 L_end")
e("s_load_dwordx4 s[32:35], s[0:1], 0")
e("s_load_dwordx4 s[36:39], s[0:1], 16")
e("s_load_dwordx2 s[40:41], s[0:1], 32")
e("s_and_b32 s%d, s2, 7" % S_T0)
e("s_lshr_b32 s%d, s2, 3" % S_T1)
e("s_and_b32 s%d, s%d, 3" % (S_NS, S_T1))
e("s_lshr_b32 s%d, s%d, 2" % (S_T1, S_T1))
e("s_lshl_b32 s%d, s%d, 3" % (S_MT, S_T0))
e("s_add_u32 s%d, s%d, s%d" % (S_MT, S_MT, S_T1))
e("v_mov_b32 v%d, v0" % V_TID)
e("v_and_b32 v%d, 63, v0" % V_LANE)
e("v_lshrrev_b32 v%d, 6, v0" % V_T0)
e("s_nop 0")
e("v_readfirstlane_b32 s%d, v%d" % (S_W, V_T0))
e("s_nop 3")
e("s_and_b32 s%d, s%d, 3" % (S_RB, S_W))
e("s_lshr_b32 s%d, s%d, 2" % (S_KH, S_W))
e("s_waitcnt lgkmcnt(0)")
def srd(d, lo, hi, n):
    e("s_mov_b32 s%d, s%d" % (d, lo))
    e("s_and_b32 s%d, s%d, 0xffff" % (d+1, hi))
    e("s_mov_b32 s%d, %d" % (d+2, n))
    e("s_mov_b32 s%d, 0x00020000" % (d+3))
srd(4, 32, 33, 10485760)
srd(16, 34, 35, 1280)
srd(20, 36, 37, 1280)
srd(8, 38, 39, 819200)
srd(12, 40, 41, 10485760)
e("v_lshrrev_b32 v%d, 5, v%d" % (V_H, V_LANE))
e("s_lshl_b32 s%d, s%d, 7" % (S_T0, S_MT))
e("s_lshl_b32 s%d, s%d, 4" % (S_T1, S_W))
e("s_add_u32 s%d, s%d, s%d" % (S_T0, S_T0, S_T1))
e("s_mul_i32 s47, s%d, 1280" % S_T0)
e("s_mov_b32 s44, 52429")
e("s_mul_i32 s46, s%d, 20480" % S_W)
for u in range(20):
    e("v_add_u32 v%d, %d, v%d" % (V_T0, 64*u, V_LANE))
    e("v_mul_lo_u32 v%d, v%d, s44" % (V_T1, V_T0))
    e("v_lshrrev_b32 v%d, 22, v%d" % (V_T1, V_T1))
    e("v_mul_u32_u24 v%d, 80, v%d" % (V_T2, V_T1))
    e("v_sub_u32 v%d, v%d, v%d" % (V_T2, V_T0, V_T2))
    e("v_xor_b32 v%d, v%d, v%d" % (V_T2, V_T2, V_T1))
    e("v_mul_u32_u24 v%d, 1280, v%d" % (V_T1, V_T1))
    e("v_lshl_add_u32 v%d, v%d, 4, v%d" % (V_T1, V_T2, V_T1))
    e("s_add_u32 s48, s46, %d" % (u*1024))
    e("s_mov_b32 m0, s48")
    e("s_nop 0")
    e("buffer_load_dwordx4 v%d, s[4:7], s47 offen lds" % V_T1)
e("v_lshlrev_b32 v%d, 2, v%d" % (V_T1, V_TID))
e("buffer_load_dword v%d, v%d, s[16:19], 0 offen" % (V_G, V_T1))
e("buffer_load_dword v%d, v%d, s[20:23], 0 offen" % (V_B, V_T1))
e("s_mul_i32 s%d, s%d, 320" % (S_T0, S_W))
e("s_mul_i32 s%d, s%d, 320" % (S_T1, S_NS))
e("s_movk_i32 s44, 3277")
e("s_movk_i32 s45, 1280")
for u in range(5):
    e("v_add_u32 v%d, s%d, v%d" % (V_T0, S_T0, V_LANE))
    if u: e("v_add_u32 v%d, %d, v%d" % (V_T0, 64*u, V_T0))
    e("v_mul_lo_u32 v%d, v%d, s44" % (V_T1, V_T0))
    e("v_lshrrev_b32 v%d, 16, v%d" % (V_T1, V_T1))
    e("v_mul_u32_u24 v%d, 20, v%d" % (V_T2, V_T1))
    e("v_sub_u32 v%d, v%d, v%d" % (V_T2, V_T0, V_T2))
    e("v_lshrrev_b32 v%d, 6, v%d" % (V_T3, V_T1))
    e("v_mul_u32_u24 v%d, 320, v%d" % (V_T3, V_T3))
    e("v_and_b32 v%d, 63, v%d" % (V_T1, V_T1))
    e("v_add_u32 v%d, v%d, v%d" % (V_T1, V_T1, V_T3))
    e("v_mul_lo_u32 v%d, v%d, s45" % (V_T1, V_T1))
    e("v_lshl_add_u32 v%d, v%d, 4, v%d" % (V_T1, V_T2, V_T1))
    e("v_add_u32 v%d, s%d, v%d" % (V_DMA+u, S_T1, V_T1))
for u in range(5):
    e("buffer_load_dwordx4 v[%d:%d], v%d, s[8:11], 0 offen" % (BF+4*u, BF+4*u+3, V_DMA+u))
e("s_mul_i32 s46, s%d, 5120" % S_W)
def dma(stage):
    slot = stage % 3
    e("s_mov_b32 s47, %d" % (stage*81920))
    for u in range(5):
        e("s_add_u32 s48, s46, %d" % (LDS_RING + slot*SLOT + u*1024))
        e("s_mov_b32 m0, s48")
        e("s_nop 0")
        e("buffer_load_dwordx4 v%d, s[8:11], s47 offen lds" % (V_DMA+u))
e("v_and_b32 v%d, 15, v%d" % (V_T0, V_LANE))
e("v_lshrrev_b32 v%d, 2, v%d" % (V_T1, V_T0))
e("v_lshl_add_u32 v%d, v%d, 3, v%d" % (V_T1, V_H, V_T1))
e("v_mul_u32_u24 v%d, 320, v%d" % (V_T1, V_T1))
e("v_and_b32 v%d, 3, v%d" % (V_T0, V_T0))
e("v_lshl_add_u32 v%d, v%d, 3, v%d" % (V_T1, V_T0, V_T1))
e("v_bfe_u32 v%d, v%d, 4, 1" % (V_T0, V_LANE))
e("v_lshl_add_u32 v%d, v%d, 5, v%d" % (V_T1, V_T0, V_T1))
e("s_mul_i32 s%d, s%d, 20480" % (S_T0, S_KH))
e("s_add_u32 s%d, s%d, %d" % (S_T0, S_T0, LDS_RING))
e("v_add_u32 v%d, s%d, v%d" % (V_LB, S_T0, V_T1))
e("v_add_u32 v%d, %d, v%d" % (V_LB+1, SLOT, V_LB))
e("v_add_u32 v%d, %d, v%d" % (V_LB+2, 2*SLOT, V_LB))
e("v_and_b32 v%d, 31, v%d" % (V_T0, V_LANE))
e("s_lshl_b32 s%d, s%d, 5" % (S_T0, S_RB))
e("v_add_u32 v%d, s%d, v%d" % (V_T0, S_T0, V_T0))
e("v_lshlrev_b32 v%d, 5, v%d" % (V_STA, V_T0))
e("v_mul_u32_u24 v%d, 1280, v%d" % (V_T1, V_T0))
e("v_and_b32 v%d, 15, v%d" % (V_T0, V_T0))
e("s_mul_i32 s%d, s%d, 40" % (S_T0, S_KH))
e("v_add_u32 v%d, s%d, v%d" % (V_T2, S_T0, V_H))
e("s_waitcnt vmcnt(7)")
e("s_barrier")
for sidx in range(20):
    e("v_add_u32 v%d, %d, v%d" % (V_T3, 2*sidx, V_T2))
    e("v_xor_b32 v%d, v%d, v%d" % (V_T3, V_T3, V_T0))
    e("v_lshl_add_u32 v%d, v%d, 4, v%d" % (V_T3, V_T3, V_T1))
    e("ds_read_b128 v[%d:%d], v%d" % (XA+4*sidx, XA+4*sidx+3, V_T3))
e("s_waitcnt lgkmcnt(0)")
e("s_barrier")
dma(1); dma(2)
e("s_waitcnt vmcnt(10)")
e("v_lshlrev_b32 v%d, 4, v%d" % (V_T0, V_LANE))
e("v_add_u32 v%d, s46, v%d" % (V_T0, V_T0))
for u in range(5):
    e("ds_write_b128 v%d, v[%d:%d] offset:%d" % (V_T0, BF+4*u, BF+4*u+3, LDS_RING + 1024*u))
e("v_cmp_gt_u32 vcc, 320, v%d" % V_TID)
e("s_and_saveexec_b64 s[50:51], vcc")
e("s_cbranch_execz L_gb_done")
e("v_lshlrev_b32 v%d, 3, v%d" % (V_T0, V_TID))
e("v_lshlrev_b32 v%d, 16, v%d" % (V_T2, V_G))
e("v_and_b32 v%d, 0xffff0000, v%d" % (V_T3, V_G))
e("ds_write_b64 v%d, v[%d:%d] offset:%d" % (V_T0, V_T2, V_T3, LDS_GB))
e("v_lshlrev_b32 v%d, 16, v%d" % (V_T2, V_B))
e("v_and_b32 v%d, 0xffff0000, v%d" % (V_T3, V_B))
e("ds_write_b64 v%d, v[%d:%d] offset:%d" % (V_T0, V_T2, V_T3, LDS_GB+2560))
lab("L_gb_done")
e("s_mov_b64 exec, s[50:51]")
e("v_mov_b32 v%d, 0" % V_SUM)
e("v_mov_b32 v%d, 0" % V_SQ)
e("s_mov_b32 s49, 0x3f803f80")
for i in range(80):
    e("v_dot2_f32_bf16 v%d, v%d, s49, v%d" % (V_SUM, XA+i, V_SUM))
    e("v_dot2_f32_bf16 v%d, v%d, v%d, v%d" % (V_SQ, XA+i, XA+i, V_SQ))
e("s_lshl_b32 s%d, s%d, 4" % (S_T0, S_KH))
e("v_lshl_add_u32 v%d, v%d, 3, s%d" % (V_T0, V_H, S_T0))
e("v_add_u32 v%d, v%d, v%d" % (V_T0, V_T0, V_STA))
e("ds_write_b64 v%d, v[%d:%d] offset:%d" % (V_T0, V_SUM, V_SQ, LDS_ST))
e("s_waitcnt lgkmcnt(0)")
e("s_barrier")
e("s_mul_i32 s%d, s%d, 1280" % (S_T0, S_KH))
e("v_lshl_add_u32 v%d, v%d, 5, s%d" % (V_GBA, V_H, S_T0))
def gbreads(s):
    b = TMP + 16*(s & 1)
    lds(("gb", s), "ds_read_b128 v[%d:%d], v%d offset:%d" % (b, b+3, V_GBA, LDS_GB + 64*s))
    lds(("gb", s), "ds_read_b128 v[%d:%d], v%d offset:%d" % (b+4, b+7, V_GBA, LDS_GB + 64*s + 16))
    lds(("gb", s), "ds_read_b128 v[%d:%d], v%d offset:%d" % (b+8, b+11, V_GBA, LDS_GB + 2560 + 64*s))
    lds(("gb", s), "ds_read_b128 v[%d:%d], v%d offset:%d" % (b+12, b+15, V_GBA, LDS_GB + 2560 + 64*s + 16))
def trreads(slot, ks, s):
    buf = s & 1
    for t in range(5):
        for q in range(2):
            off = (16*ks + 4*q)*320 + 64*t
            r = BF + buf*20 + 4*t + 2*q
            lds(("tr", s), "ds_read_b64_tr_b16 v[%d:%d], v%d offset:%d" % (r, r+1, V_LB+slot, off))
def normalize(s):
    b = TMP + 16*(s & 1)
    for d in range(4):
        R = XA + 4*s + d
        e("v_lshlrev_b32 v%d, 16, v%d" % (V_T0, R))
        e("v_and_b32 v%d, 0xffff0000, v%d" % (V_T1, R))
        e("v_fma_f32 v%d, v%d, v%d, v%d" % (V_T0, V_T0, V_RS, V_NM))
        e("v_fma_f32 v%d, v%d, v%d, v%d" % (V_T1, V_T1, V_RS, V_NM))
        e("v_fma_f32 v%d, v%d, v%d, v%d" % (V_T0, V_T0, b+2*d, b+8+2*d))
        e("v_fma_f32 v%d, v%d, v%d, v%d" % (V_T1, V_T1, b+2*d+1, b+8+2*d+1))
        e("v_cvt_pk_bf16_f32 v%d, v%d, v%d" % (R, V_T0, V_T1))
lds("st", "ds_read_b128 v[%d:%d], v%d offset:%d" % (BF+20, BF+23, V_STA, LDS_ST))
lds("st", "ds_read_b128 v[%d:%d], v%d offset:%d" % (BF+24, BF+27, V_STA, LDS_ST+16))
gbreads(0)
trreads(0, 0, 0)
wait_tag("st")
e("v_add_f32 v%d, v%d, v%d" % (V_SUM, BF+20, BF+22))
e("v_add_f32 v%d, v%d, v%d" % (V_T0, BF+24, BF+26))
e("v_add_f32 v%d, v%d, v%d" % (V_SUM, V_SUM, V_T0))
e("v_add_f32 v%d, v%d, v%d" % (V_SQ, BF+21, BF+23))
e("v_add_f32 v%d, v%d, v%d" % (V_T0, BF+25, BF+27))
e("v_add_f32 v%d, v%d, v%d" % (V_SQ, V_SQ, V_T0))
e("v_mul_f32 v%d, 0x3acccccd, v%d" % (V_SUM, V_SUM))
e("v_mul_f32 v%d, 0x3acccccd, v%d" % (V_SQ, V_SQ))
e("v_fma_f32 v%d, -v%d, v%d, v%d" % (V_SQ, V_SUM, V_SUM, V_SQ))
e("v_max_f32 v%d, 0, v%d" % (V_SQ, V_SQ))
e("v_add_f32 v%d, 0x3727c5ac, v%d" % (V_SQ, V_SQ))
e("v_rsq_f32 v%d, v%d" % (V_RS, V_SQ))
e("s_nop 0")
e("v_mul_f32 v%d, v%d, v%d" % (V_NM, V_SUM, V_RS))
e("v_sub_f32 v%d, 0, v%d" % (V_NM, V_NM))
wait_tag(("gb", 0))
normalize(0)
gbreads(1)
for j in range(5):
    slot = j % 3
    for ks in range(4):
        s = 4*j + ks
        if ks == 0 and j > 0:
            e("s_waitcnt vmcnt(%d)" % (5 if j < 4 else 0))
            e("s_barrier")
            trreads(slot, 0, s)
            if j in (1, 2): dma(j+2)
        if ks < 3:
            trreads(slot, ks+1, s+1)
        if s + 2 < 20: gbreads(s+2)
        wait_tag(("tr", s))
        buf = s & 1
        for t in range(5):
            a = ACC + 16*t
            c = ("v[%d:%d]" % (a, a+15)) if s > 0 else "0"
            e("v_mfma_f32_32x32x16_bf16 v[%d:%d], v[%d:%d], v[%d:%d], %s" %
              (a, a+15, BF+buf*20+4*t, BF+buf*20+4*t+3, XA+4*s, XA+4*s+3, c))
        if s + 1 < 20:
            wait_tag(("gb", s+1))
            normalize(s+1)
            e("s_nop 1")
wait_all()
e("s_nop 15")
e("s_nop 3")
e("s_barrier")
e("v_lshlrev_b32 v%d, 4, v%d" % (V_EP, V_LANE))
e("s_mul_i32 s%d, s%d, 20480" % (S_T0, S_RB))
e("s_add_u32 s%d, s%d, %d" % (S_T0, S_T0, LDS_RING))
e("v_add_u32 v%d, s%d, v%d" % (V_EP, S_T0, V_EP))
e("v_and_b32 v%d, 31, v%d" % (V_T0, V_LANE))
e("v_mul_u32_u24 v%d, 208, v%d" % (V_T0, V_T0))
e("v_lshl_add_u32 v%d, v%d, 3, v%d" % (V_T0, V_H, V_T0))
e("s_mul_i32 s%d, s%d, 6656" % (S_T0, S_W))
e("s_add_u32 s%d, s%d, %d" % (S_T0, S_T0, LDS_RING + 81920))
e("v_add_u32 v%d, s%d, v%d" % (V_T0, S_T0, V_T0))
e("s_lshl_b32 s%d, s%d, 7" % (S_T1, S_MT))
e("s_lshl_b32 s45, s%d, 5" % S_RB)
e("s_add_u32 s%d, s%d, s45" % (S_T1, S_T1))
e("s_mul_i32 s%d, s%d, 1280" % (S_T1, S_T1))
e("s_mul_i32 s45, s%d, 320" % S_NS)
e("s_add_u32 s%d, s%d, s45" % (S_T1, S_T1))
e("s_cmp_eq_u32 s%d, 0" % S_KH)
e("s_cbranch_scc1 L_ep_lo")
def finalize(tiles, colbase, nch, magic, shift, nst):
    for t in tiles:
        for q in range(4):
            e("ds_read_b128 v[%d:%d], v%d offset:%d" % (BF+4*q, BF+4*q+3, V_EP, 1024*(4*t+q)))
        e("s_waitcnt lgkmcnt(0)")
        for q in range(4):
            a = ACC + 16*t + 4*q
            for z in range(4):
                e("v_add_f32 v%d, v%d, v%d" % (a+z, a+z, BF+4*q+z))
            e("v_cvt_pk_bf16_f32 v%d, v%d, v%d" % (BF+20+2*q, a, a+1))
            e("v_cvt_pk_bf16_f32 v%d, v%d, v%d" % (BF+20+2*q+1, a+2, a+3))
            e("ds_write_b64 v%d, v[%d:%d] offset:%d" % (V_T0, BF+20+2*q, BF+20+2*q+1, 64*(t-tiles[0])+16*q))
    e("s_waitcnt lgkmcnt(0)")
    e("s_mov_b32 s44, %d" % magic)
    for u in range(nst):
        e("v_add_u32 v%d, %d, v%d" % (V_T1, 64*u, V_LANE))
        e("v_mul_lo_u32 v%d, v%d, s44" % (V_T2, V_T1))
        e("v_lshrrev_b32 v%d, %d, v%d" % (V_T2, shift, V_T2))
        e("v_mul_u32_u24 v%d, %d, v%d" % (V_T3, nch, V_T2))
        e("v_sub_u32 v%d, v%d, v%d" % (V_T1, V_T1, V_T3))
        e("v_mul_u32_u24 v%d, 208, v%d" % (V_T3, V_T2))
        e("v_lshl_add_u32 v%d, v%d, 4, v%d" % (V_T3, V_T1, V_T3))
        e("v_add_u32 v%d, s%d, v%d" % (V_T3, S_T0, V_T3))
        e("ds_read_b128 v[%d:%d], v%d" % (XA+4*u, XA+4*u+3, V_T3))
        e("v_mul_u32_u24 v%d, 1280, v%d" % (V_T3, V_T2))
        e("v_lshl_add_u32 v%d, v%d, 4, v%d" % (XA+40+u, V_T1, V_T3))
    e("s_waitcnt lgkmcnt(0)")
    for u in range(nst):
        e("buffer_store_dwordx4 v[%d:%d], v%d, s[12:15], s%d offen offset:%d nt" % (XA+4*u, XA+4*u+3, XA+40+u, S_T1, colbase*2))
for i in range(12):
    e("ds_write_b128 v%d, v[%d:%d] offset:%d" % (V_EP, ACC+4*i, ACC+4*i+3, 1024*i))
e("s_waitcnt lgkmcnt(0)")
e("s_barrier")
finalize([3, 4], 96, 8, 8192, 16, 4)
e("s_branch L_end")
lab("L_ep_lo")
for i in range(12, 20):
    e("ds_write_b128 v%d, v[%d:%d] offset:%d" % (V_EP, ACC+4*i, ACC+4*i+3, 1024*i))
e("s_waitcnt lgkmcnt(0)")
e("s_barrier")
finalize([0, 1, 2], 0, 12, 5462, 16, 6)
lab("L_end")
e("s_endpgm")

body = "\n".join(L)
out = HDR + """; Override launch geometry by editing the next line.
; @launch grid=(256,1,1) block=(512,1,1) lds=%d
.amdgcn_target "amdgcn-amd-amdhsa--gfx950"
.text
.globl standalone__layernorm_linear__sampling_kernel
.p2align 8
.type standalone__layernorm_linear__sampling_kernel,@function
standalone__layernorm_linear__sampling_kernel:
%s
.section .rodata,"a"
.p2align 6
.amdhsa_kernel standalone__layernorm_linear__sampling_kernel
  .amdhsa_next_free_vgpr %d
  .amdhsa_next_free_sgpr 64
  .amdhsa_accum_offset %d
  .amdhsa_group_segment_fixed_size 0
  .amdhsa_kernarg_size 56
  .amdhsa_user_sgpr_count 2
  .amdhsa_user_sgpr_kernarg_segment_ptr 1
  .amdhsa_system_sgpr_workgroup_id_x 1
.end_amdhsa_kernel
""" % (LDS_TOTAL, body, NVGPR, NVGPR)
open(sys.argv[1] if len(sys.argv) > 1 else 'standalone__layernorm_linear__sampling.s', 'w').write(out)
```
